```python
import torch

def _softmax(x, axis=-1):
    return torch.softmax(x, dim=axis)

def _gelu(x):
    return torch.nn.functional.gelu(x, approximate='tanh')

def _silu(x):
    return torch.nn.functional.silu(x)

def _sigmoid(x):
    return torch.sigmoid(x)

def _layernorm(x, axis=-1, eps=1e-05):
    m = x.mean(dim=axis, keepdim=True)
    v = x.var(dim=axis, keepdim=True, unbiased=False)
    return (x - m) / torch.sqrt(v + eps)

def _scatter_add(tgt, idx, src, axis=0):
    return tgt.clone().index_add_(axis, idx, src)

def _segment_sum(src, seg, n):
    out = torch.zeros((n,) + src.shape[1:], dtype=src.dtype)
    return out.index_add_(0, seg, src)

def _pad(x, pw):
    flat = tuple((v for pair in reversed(pw) for v in pair))
    return torch.nn.functional.pad(x, flat)
kernel_name = 'recurrent_scan__mha_block_cached__mixer_gmlp__prompt'

def setup_inputs():

    _w = lambda a: (lambda t: t.to(torch.bfloat16) if t.is_floating_point() else t)(torch.as_tensor(a))

    def _A_setup():
        B, Sq, D = (1, 2048, 448)
        H, Sk, Dh = (16, 2048, 256)
        return {'x': _w((lambda *s: torch.randn(*s, dtype=torch.bfloat16) * 0.05)(B, Sq, D)), 'k_cache': _w((lambda *s: torch.randn(*s, dtype=torch.bfloat16) * 0.8)(B, H, Sk, Dh)), 'v_cache': _w((lambda *s: torch.randn(*s, dtype=torch.bfloat16) * 0.2)(B, H, Sk, Dh)), 'wq': _w((lambda *s: torch.randn(*s, dtype=torch.bfloat16) * 0.8)(D, H * Dh) * D ** (-0.5)), 'wo': _w((lambda *s: torch.randn(*s, dtype=torch.bfloat16) * 0.2)(H * Dh, D) * (H * Dh) ** (-0.5))}
    _A_in = _A_setup()

    def _B_setup():
        B, S, D, F = (1, 2048, 448, 1792)
        Fh = F // 2
        return {'x': _w((lambda *s: torch.randn(*s, dtype=torch.bfloat16) * 0.05)(B, S, D)), 'w_in': _w((lambda *s: torch.randn(*s, dtype=torch.bfloat16) * 0.4)(D, 2 * Fh)), 'w_sp': _w(0.01 * (lambda *s: torch.randn(*s, dtype=torch.bfloat16) * 0.4)(S, S)), 'b_sp': _w(1.0 + 0.01 * (lambda *s: torch.randn(*s, dtype=torch.bfloat16) * 0.1)(S)), 'w_out': _w((lambda *s: torch.randn(*s, dtype=torch.bfloat16) * 0.1)(Fh, D))}
    _B_in = _B_setup()
    return {'A_x': _A_in['x'], 'A_k_cache': _A_in['k_cache'], 'A_v_cache': _A_in['v_cache'], 'A_wq': _A_in['wq'], 'A_wo': _A_in['wo'], 'B_x': _B_in['x'], 'B_w_in': _B_in['w_in'], 'B_w_sp': _B_in['w_sp'], 'B_b_sp': _B_in['b_sp'], 'B_w_out': _B_in['w_out']}

def reference(A_x, A_k_cache, A_v_cache, A_wq, A_wo, B_x, B_w_in, B_w_sp, B_b_sp, B_w_out):

    def _A_ref(x, k_cache, v_cache, wq, wo):
        B, Sq, D = x.shape
        H, Dh = (16, 256)
        q = (lambda x, *d: x.permute(*d))((x @ wq).reshape(B, Sq, H, Dh), 0, 2, 1, 3)
        scores = torch.einsum('bhqd,bhkd->bhqk', q, k_cache) * Dh ** (-0.5)
        p = _softmax(scores, axis=-1)
        o = torch.einsum('bhqk,bhkd->bhqd', p, v_cache)
        return (lambda x, *d: x.permute(*d))(o, 0, 2, 1, 3).reshape(B, Sq, H * Dh) @ wo

    def _B_ref(x, w_in, w_sp, b_sp, w_out):
        B, S, D = x.shape
        F = w_in.shape[-1]
        Fh = F // 2
        z = _gelu(torch.einsum('bsd,df->bsf', x, w_in))
        z1 = z[..., :Fh].clone()
        z2 = _layernorm(z[..., Fh:], axis=-1)
        g = torch.einsum('ts,bsf->btf', w_sp, z2) + b_sp[None, :, None]
        return torch.einsum('bsf,fd->bsd', z1 * g, w_out)
    x = A_x
    xn = _layernorm(x, axis=-1)
    s = _A_ref(xn, A_k_cache, A_v_cache, A_wq, A_wo)
    g = _silu(_B_ref(xn, B_w_in, B_w_sp, B_b_sp, B_w_out))
    return x + s * g
```

```python
class Kern:
    def __init__(self, name):
        self.name = name
        self.lines = []
        self.lds_q = []
        self.vm_q = []
        self.nlabel = 0

    def __call__(self, s):
        self.lines.append("    " + s)

    def label(self, s):
        self.lines.append(s + ":")

    def comment(self, s):
        self.lines.append("    ; " + s)

    def newlabel(self, base):
        self.nlabel += 1
        return f"L_{self.name}_{base}_{self.nlabel}"

    def ds(self, text, tag=None):
        self(text)
        self.lds_q.append(tag)

    def ds_wait(self, tags):
        if not isinstance(tags, (list, tuple, set)):
            tags = [tags]
        last = -1
        for i, t in enumerate(self.lds_q):
            if t in tags:
                last = i
        if last < 0:
            return
        n = len(self.lds_q) - last - 1
        n = min(n, 15)
        self(f"s_waitcnt lgkmcnt({n})")
        self.lds_q = self.lds_q[len(self.lds_q) - n:] if n else []

    def ds_wait_all(self):
        self("s_waitcnt lgkmcnt(0)")
        self.lds_q = []

    def vm(self, text, tag=None):
        self(text)
        self.vm_q.append(tag)

    def vm_wait(self, tags):
        if not isinstance(tags, (list, tuple, set)):
            tags = [tags]
        last = -1
        for i, t in enumerate(self.vm_q):
            if t in tags:
                last = i
        if last < 0:
            return
        n = len(self.vm_q) - last - 1
        n = min(n, 63)
        self(f"s_waitcnt vmcnt({n})")
        self.vm_q = self.vm_q[len(self.vm_q) - n:] if n else []

    def vm_wait_all(self):
        self("s_waitcnt vmcnt(0)")
        self.vm_q = []

    def text(self):
        return "\n".join(self.lines) + "\n"


def vr(base, n=1):
    return f"v{base}" if n == 1 else f"v[{base}:{base + n - 1}]"


def ar(base, n=1):
    return f"a{base}" if n == 1 else f"a[{base}:{base + n - 1}]"


def sr(base, n=1):
    return f"s{base}" if n == 1 else f"s[{base}:{base + n - 1}]"


def kernel_header(name):
    return (f".globl {name}\n.p2align 8\n.type {name},@function\n{name}:\n")


def kernel_desc(name, vgpr, sgpr, accum, idy=False):
    s = f".p2align 6\n.amdhsa_kernel {name}\n"
    s += f"  .amdhsa_next_free_vgpr {vgpr}\n"
    s += f"  .amdhsa_next_free_sgpr {sgpr}\n"
    s += f"  .amdhsa_accum_offset {accum}\n"
    s += "  .amdhsa_group_segment_fixed_size 0\n"
    s += "  .amdhsa_kernarg_size 104\n"
    s += "  .amdhsa_user_sgpr_count 2\n"
    s += "  .amdhsa_user_sgpr_kernarg_segment_ptr 1\n"
    s += "  .amdhsa_system_sgpr_workgroup_id_x 1\n"
    if idy:
        s += "  .amdhsa_system_sgpr_workgroup_id_y 1\n"
    s += ".end_amdhsa_kernel\n"
    return s


def make_srd(k, d, ptr, nbytes, add_lo=None):
    if add_lo is None:
        k(f"s_mov_b32 s{d}, s{ptr}")
        k(f"s_mov_b32 s{d + 1}, s{ptr + 1}")
    else:
        k(f"s_add_u32 s{d}, s{ptr}, {add_lo}")
        k(f"s_addc_u32 s{d + 1}, s{ptr + 1}, 0")
    k(f"s_mov_b32 s{d + 2}, {nbytes}")
    k(f"s_mov_b32 s{d + 3}, 0x00020000")


def spread(nslots, items, start, end):
    out = {}
    n = len(items)
    w = end - start
    for i, it in enumerate(items):
        g = start + (i * w) // n
        out.setdefault(g, []).append(it)
    return out
```

```python
from asmlib import *
from layout import *
import os
ABL = os.environ.get('ABL', '').split(',')

S_K, S_V, S_WQ, S_XN, S_O = 16, 20, 24, 28, 32
S_KOFF, S_VOFF, S_CNT, S_WOFF, S_W4K = 36, 37, 38, 39, 40
S_M0K, S_M0V = 42, 45
S_HEAD, S_QB = 12, 13
V_LANE, V_L31, V_H = 1, 2, 3
V_KA, V_VA, V_WA, V_DK, V_DV, V_DW = 8, 16, 20, 24, 28, 30
V_L, V_TS, V_SA, V_SB, V_E, V_MX, V_TMP, V_ALPHA = 34, 35, 36, 37, 38, 42, 43, 44
V_P = 48
V_NEGM = 64
V_S = [80, 96, 112]
V_VF = 128
V_XN = 128
A_O, A_Q, A_KF = 0, 128, 192

LDS_K, LDS_V = 0, 49152
SLOT = 16384
QSCALE = 0x3db8aa3b
THRESH = 0x44800000


def mfma(d, a, b, c):
    return f"v_mfma_f32_32x32x16_bf16 {d}, {a}, {b}, {c}"


def softmax_ops(T):
    ops = []
    E = V_E

    def exps(i):
        e = E + 2 * (i & 1)
        return [f"v_exp_f32 v{e}, v{T + 2 * i}", f"v_exp_f32 v{e + 1}, v{T + 2 * i + 1}"]

    def post(i):
        e = E + 2 * (i & 1)
        if i == 0:
            o = [f"v_add_f32 v{V_SA}, v{e}, v{e + 1}"]
        elif i == 1:
            o = [f"v_add_f32 v{V_SB}, v{e}, v{e + 1}"]
        else:
            o = [f"v_add_f32 v{V_SA}, v{V_SA}, v{e}", f"v_add_f32 v{V_SB}, v{V_SB}, v{e + 1}"]
        o.append(f"v_cvt_pk_bf16_f32 v{V_P + i}, v{e}, v{e + 1}")
        return o

    ops += exps(0)
    for i in range(1, 8):
        ops += exps(i)
        ops += post(i - 1)
    ops += ["s_nop 0"] + post(7)
    return ops


def k_read(t, slot):
    off = LDS_K + slot * SLOT + (t >> 3) * 256
    return f"ds_read_b128 {ar(A_KF + 4 * t, 4)}, v{V_KA + (t & 7)} offset:{off}"


def v_read(i, u, slot):
    ks, dt = i // 8, i % 8
    off = slot * SLOT + ks * 8192 + u * 4096 + (dt >> 2) * 256
    return f"ds_read_b64_tr_b16 {vr(V_VF + 4 * i + 2 * u, 2)}, v{V_VA + (dt & 3)} offset:{off}"


def pv_mfma(i):
    ks, dt = i // 8, i % 8
    o = ar(A_O + 16 * dt, 16)
    return mfma(o, vr(V_VF + 4 * i, 4), vr(V_P + 4 * ks, 4), o)


def dma_ops(kslot, vslot):
    ops = [f"s_mov_b32 m0, s{S_M0K + kslot}", "s_nop 0"]
    for i in range(4):
        ops.append(f"buffer_load_dwordx4 v{V_DK + i}, {sr(S_K, 4)}, s{S_KOFF} offen offset:{1024 * i} lds")
    ops += [f"s_add_u32 s{S_KOFF}, s{S_KOFF}, {SLOT}", f"s_mov_b32 m0, s{S_M0V + vslot}", "s_nop 0"]
    for i in range(4):
        ops.append(f"buffer_load_dwordx4 v{V_DV + (i & 1)}, {sr(S_V, 4)}, s{S_VOFF} offen offset:{1024 * i} lds")
    ops.append(f"s_add_u32 s{S_VOFF}, s{S_VOFF}, {SLOT}")
    return ops


def gen_slow(k, lab, back, T, N):
    k.label(lab)
    k("s_nop 15")
    k("s_nop 7")
    k(f"v_max3_f32 v{V_MX}, v{T}, v{T + 1}, v{T + 2}")
    for i in range(3, 15, 2):
        k(f"v_max3_f32 v{V_MX}, v{V_MX}, v{T + i}, v{T + i + 1}")
    k(f"v_max_f32 v{V_MX}, v{V_MX}, v{T + 15}")
    k(f"v_mov_b32 v{V_TMP}, v{V_MX}")
    k("s_nop 1")
    k(f"v_permlane32_swap_b32 v{V_TMP}, v{V_MX}")
    k("s_nop 1")
    k(f"v_max_f32 v{V_MX}, v{V_MX}, v{V_TMP}")
    k(f"v_max_f32 v{V_MX}, 0, v{V_MX}")
    k(f"v_sub_f32 v{V_ALPHA}, 0, v{V_MX}")
    k(f"v_exp_f32 v{V_ALPHA}, v{V_ALPHA}")
    for i in range(16):
        k(f"v_sub_f32 v{T + i}, v{T + i}, v{V_MX}")
        k(f"v_sub_f32 v{N + i}, v{N + i}, v{V_MX}")
        k(f"v_sub_f32 v{V_NEGM + i}, v{V_NEGM + i}, v{V_MX}")
    k(f"v_mul_f32 v{V_L}, v{V_L}, v{V_ALPHA}")
    for i in range(128):
        t = V_E + (i & 3)
        k(f"v_accvgpr_read_b32 v{t}, a{A_O + i}")
        k(f"v_mul_f32 v{t}, v{t}, v{V_ALPHA}")
        k(f"v_accvgpr_write_b32 a{A_O + i}, v{t}")
    for o in softmax_ops(T):
        k(o)
    k(f"v_add_f32 v{V_TS}, v{V_SA}, v{V_SB}")
    k("s_nop 3")
    k(f"s_branch {back}")


def gen_iter(k, j3, first, slow_list):
    cur, nxt = V_S[j3], V_S[(j3 + 1) % 3]
    kslot, vslot = (j3 + 1) % 3, j3
    M = []
    if not first:
        for i in range(12, 16):
            M.append((pv_mfma(i), []))
    for t in range(16):
        c = vr(V_NEGM, 16) if t == 0 else vr(nxt, 16)
        M.append((mfma(vr(nxt, 16), ar(A_KF + 4 * t, 4), ar(A_Q + 4 * t, 4), c), [("k", t)]))
    for i in range(12):
        M.append((pv_mfma(i), [("v", i, 0), ("v", i, 1)]))
    nm = len(M)
    q0 = 0 if first else 4
    p0 = q0 + 16
    fill = {g: [] for g in range(-1, nm)}
    for t in range(16):
        g = max(-1, q0 + t - 6)
        fill[g].append(("ds", k_read(t, kslot), ("k", t)))
    sm = softmax_ops(cur)
    for g, ops in spread(nm, sm, -1 if first else 0, p0 - 1).items():
        fill[g] += [("valu", o, None) for o in ops]
    vreads = [(i, u) for i in range(16) for u in range(2)]
    for g, items in spread(nm, vreads, p0 - 7, nm - 2).items():
        fill[g] += [("ds", v_read(i, u, vslot), ("v", i, u)) for (i, u) in items]
    for g, ops in spread(nm, dma_ops(j3, (j3 + 2) % 3), p0, nm - 1).items():
        if 'nodma' in ABL: continue
        fill[g] += [("raw", o, None) for o in ops]
    if 'nosm' in ABL:
        for g in fill: fill[g] = [f for f in fill[g] if f[0] != 'valu']
    if 'nov' in ABL:
        for g in fill: fill[g] = [f for f in fill[g] if not (f[0] == 'ds' and f[2][0] == 'v')]
    if 'nok' in ABL:
        for g in fill: fill[g] = [f for f in fill[g] if not (f[0] == 'ds' and f[2][0] == 'k')]

    def emit_fill(g):
        for kind, text, tag in fill[g]:
            if kind == "ds":
                k.ds(text, tag)
            else:
                k(text)

    emit_fill(-1)
    for idx, (text, tags) in enumerate(M):
        if idx == p0:
            slow = k.newlabel("slow")
            back = k.newlabel("back")
            k(f"v_add_f32 v{V_TS}, v{V_SA}, v{V_SB}")
            k(f"v_cmp_lt_f32 vcc, {THRESH}, v{V_TS}")
            k("s_nop 1")
            k(f"s_cbranch_vccnz {slow}")
            k.label(back)
            k(f"v_add_f32 v{V_L}, v{V_L}, v{V_TS}")
            slow_list.append((slow, back, cur, nxt))
        if tags:
            k.ds_wait(tags)
        k(text)
        emit_fill(idx)
    k("s_waitcnt vmcnt(8) lgkmcnt(0)")
    k.lds_q = []
    if 'nobar' not in ABL: k("s_barrier")


def gen_attn():
    k = Kern("attn")
    k("s_cmp_ge_u32 s2, 256")
    k("s_cbranch_scc1 L_attn_done")
    k("s_load_dwordx2 s[4:5], s[0:1], 8")
    k("s_load_dwordx2 s[6:7], s[0:1], 16")
    k("s_load_dwordx2 s[8:9], s[0:1], 24")
    k("s_load_dwordx2 s[10:11], s[0:1], 96")
    if 'stamp' in ABL:
        k("s_load_dwordx2 s[66:67], s[0:1], 88")
        k("s_memtime s[50:51]")
        k("s_memrealtime s[52:53]")
    k("s_and_b32 s14, s2, 7")
    k("s_lshr_b32 s15, s2, 3")
    k(f"s_lshr_b32 s{S_HEAD}, s15, 4")
    k(f"s_lshl_b32 s14, s14, 1")
    k(f"s_add_u32 s{S_HEAD}, s{S_HEAD}, s14")
    k(f"s_and_b32 s{S_QB}, s15, 15")
    k(f"v_and_b32 v{V_LANE}, 63, v0")
    k(f"v_and_b32 v{V_L31}, 31, v0")
    k(f"v_bfe_u32 v{V_H}, v0, 5, 1")
    k("v_lshrrev_b32 v4, 6, v0")
    k("s_nop 0")
    k(f"v_readfirstlane_b32 s3, v4")
    k("s_nop 3")
    k(f"s_lshl_b32 s{S_W4K}, s3, 12")
    for i in range(3):
        k(f"s_add_u32 s{S_M0K + i}, s{S_W4K}, {LDS_K + i * SLOT}")
        k(f"s_add_u32 s{S_M0V + i}, s{S_W4K}, {LDS_V + i * SLOT}")
    k("s_waitcnt lgkmcnt(0)")
    k(f"s_lshl_b32 s14, s{S_HEAD}, 20")
    make_srd(k, S_K, 4, 1 << 20, add_lo="s14")
    make_srd(k, S_V, 6, 1 << 20, add_lo="s14")
    make_srd(k, S_WQ, 8, 448 * 8192)
    make_srd(k, S_XN, 10, 2048 * 896, add_lo=WS_XN)
    make_srd(k, S_O, 10, 2048 * 8192, add_lo=WS_O)

    k(f"v_and_b32 v5, 15, v{V_L31}")
    k(f"v_lshlrev_b32 v6, 9, v{V_L31}")
    for tt in range(8):
        k(f"v_add_u32 v7, {2 * tt}, v{V_H}")
        k("v_xor_b32 v7, v7, v5")
        k(f"v_lshl_add_u32 v{V_KA + tt}, v7, 4, v6")
    k(f"v_bfe_u32 v5, v{V_LANE}, 2, 2")
    k(f"v_and_b32 v6, 3, v{V_LANE}")
    k(f"v_bfe_u32 v7, v{V_LANE}, 4, 1")
    k("v_lshlrev_b32 v46, 3, v6")
    k("v_lshl_add_u32 v46, v7, 5, v46")
    k(f"v_lshl_add_u32 v47, v{V_H}, 2, v5")
    k(f"v_lshl_add_u32 v45, v{V_H}, 3, v5")
    for d in range(4):
        k(f"v_xor_b32 v7, {d}, v5")
        k("v_lshl_add_u32 v7, v7, 6, v46")
        k(f"v_lshl_add_u32 v{V_VA + d}, v47, 9, v7")
        k(f"v_add_u32 v{V_VA + d}, {LDS_V}, v{V_VA + d}")
        k(f"v_lshl_add_u32 v{V_WA + d}, v45, 9, v7")
        k(f"v_add_u32 v{V_WA + d}, {LDS_V}, v{V_WA + d}")
    k("s_and_b32 s14, s3, 1")
    k("s_lshl_b32 s14, s14, 3")
    k(f"v_xor_b32 v5, s14, v{V_L31}")
    k(f"v_xor_b32 v5, v5, v{V_H}")
    k(f"v_lshlrev_b32 v6, 9, v{V_H}")
    k(f"v_add_u32 v6, s{S_W4K}, v6")
    for i in range(4):
        k(f"v_xor_b32 v7, {2 * i}, v5")
        k(f"v_lshl_add_u32 v{V_DK + i}, v7, 4, v6")
    for i in range(2):
        k(f"v_add_u32 v7, {2 * i}, v{V_H}")
        k("v_lshlrev_b32 v7, 2, v7")
        k(f"v_xor_b32 v7, v7, v{V_L31}")
        k(f"v_lshl_add_u32 v{V_DV + i}, v7, 4, v6")
    k("s_lshl_b32 s14, s3, 16")
    k(f"v_lshlrev_b32 v6, 13, v{V_H}")
    k("v_add_u32 v6, s14, v6")
    for i in range(4):
        k(f"v_add_u32 v7, {(2 * i) & 3}, v{V_H}")
        k("v_lshlrev_b32 v7, 2, v7")
        k(f"v_xor_b32 v7, v7, v{V_L31}")
        k(f"v_lshl_add_u32 v{V_DW + i}, v7, 4, v6")
        k(f"v_add_u32 v{V_DW + i}, {2 * i * 8192}, v{V_DW + i}")
    k(f"s_lshl_b32 s{S_WOFF}, s{S_HEAD}, 9")
    k(f"s_mov_b32 s{S_KOFF}, 0")
    k(f"s_mov_b32 s{S_VOFF}, 0")

    def wq_dma(ch):
        slot = ch % 3
        for i in range(4):
            k(f"s_add_u32 m0, s{S_M0V + slot}, {1024 * i}")
            k("s_nop 0")
            k.vm(f"buffer_load_dwordx4 v{V_DW + i}, {sr(S_WQ, 4)}, s{S_WOFF} offen lds", ("w", ch))
        k(f"s_add_u32 s{S_WOFF}, s{S_WOFF}, {32 * 8192}")

    def k_dma(slot, tag):
        k(f"s_mov_b32 m0, s{S_M0K + slot}")
        k("s_nop 0")
        for i in range(4):
            k.vm(f"buffer_load_dwordx4 v{V_DK + i}, {sr(S_K, 4)}, s{S_KOFF} offen offset:{1024 * i} lds", tag)
        k(f"s_add_u32 s{S_KOFF}, s{S_KOFF}, {SLOT}")

    def v_dma(slot, tag):
        k(f"s_mov_b32 m0, s{S_M0V + slot}")
        k("s_nop 0")
        for i in range(4):
            k.vm(f"buffer_load_dwordx4 v{V_DV + (i & 1)}, {sr(S_V, 4)}, s{S_VOFF} offen offset:{1024 * i} lds", tag)
        k(f"s_add_u32 s{S_VOFF}, s{S_VOFF}, {SLOT}")

    wq_dma(0)
    k(f"s_lshl_b32 s14, s{S_QB}, 7")
    k("s_lshl_b32 s15, s3, 5")
    k("s_add_u32 s14, s14, s15")
    k(f"v_add_u32 v5, s14, v{V_L31}")
    k("v_mul_u32_u24 v6, 896, v5")
    k(f"v_lshl_add_u32 v6, v{V_H}, 4, v6")
    for t in range(28):
        k.vm(f"buffer_load_dwordx4 {vr(V_XN + 4 * t, 4)}, v6, {sr(S_XN, 4)}, 0 offen offset:{32 * t}", ("x", t))
    wq_dma(1)
    wq_dma(2)
    for s in range(3):
        k_dma(s, ("K", s))
    k(f"v_lshlrev_b32 v4, 13, v5")
    k(f"s_lshl_b32 s14, s{S_HEAD}, 9")
    k(f"v_add_u32 v4, s14, v4")
    k(f"v_lshl_add_u32 v4, v{V_H}, 4, v4")

    for ch in range(14):
        slot = ch % 3
        k.vm_wait([("w", ch), ("x", 2 * ch), ("x", 2 * ch + 1)])
        k("s_barrier")
        if ch >= 1 and ch + 2 < 14:
            wq_dma(ch + 2)
        for ks in range(2):
            for dt in range(8):
                i = ks * 8 + dt
                for u in range(2):
                    off = slot * SLOT + ks * 8192 + u * 2048 + (dt >> 2) * 256
                    k.ds(f"ds_read_b64_tr_b16 {ar(A_KF + 4 * i + 2 * u, 2)}, v{V_WA + (dt & 3)} offset:{off}", ("w", i))
        for ks in range(2):
            for dt in range(8):
                i = ks * 8 + dt
                k.ds_wait([("w", i)])
                o = ar(A_O + 16 * dt, 16)
                c = "0" if (ch == 0 and ks == 0) else o
                k(mfma(o, ar(A_KF + 4 * i, 4), vr(V_XN + 4 * (2 * ch + ks), 4), c))
    k("s_barrier")
    v_dma(0, ("V", 0))
    v_dma(1, ("V", 1))
    k("s_nop 15")
    k("s_nop 3")
    T0 = V_S[0]
    PK = V_S[1]
    k(f"s_mov_b32 s14, {QSCALE}")
    for dt in range(8):
        for r in range(16):
            k(f"v_accvgpr_read_b32 v{T0 + r}, a{A_O + 16 * dt + r}")
        for r in range(16):
            k(f"v_mul_f32 v{T0 + r}, s14, v{T0 + r}")
        for i in range(8):
            k(f"v_cvt_pk_bf16_f32 v{PK + i}, v{T0 + 2 * i}, v{T0 + 2 * i + 1}")
        k("s_nop 1")
        for a, b in ((0, 2), (1, 3), (4, 6), (5, 7)):
            k(f"v_permlane32_swap_b32 v{PK + a}, v{PK + b}")
        k("s_nop 1")
        for i in range(8):
            k(f"v_accvgpr_write_b32 a{A_Q + 8 * dt + i}, v{PK + i}")
        for r in range(16):
            k(f"v_accvgpr_write_b32 a{A_O + 16 * dt + r}, 0")
    k.vm_wait([("K", 0), ("K", 1), ("V", 0)])
    k("s_barrier")
    for t in range(16):
        k.ds(k_read(t, 0), ("k", t))
    S0 = V_S[0]
    for t in range(16):
        k.ds_wait([("k", t)])
        c = "0" if t == 0 else vr(S0, 16)
        k(mfma(vr(S0, 16), ar(A_KF + 4 * t, 4), ar(A_Q + 4 * t, 4), c))
    k("s_nop 15")
    k("s_nop 3")
    k(f"v_max3_f32 v{V_MX}, v{S0}, v{S0 + 1}, v{S0 + 2}")
    for i in range(3, 15, 2):
        k(f"v_max3_f32 v{V_MX}, v{V_MX}, v{S0 + i}, v{S0 + i + 1}")
    k(f"v_max_f32 v{V_MX}, v{V_MX}, v{S0 + 15}")
    k(f"v_mov_b32 v{V_TMP}, v{V_MX}")
    k("s_nop 1")
    k(f"v_permlane32_swap_b32 v{V_TMP}, v{V_MX}")
    k("s_nop 1")
    k(f"v_max_f32 v{V_MX}, v{V_MX}, v{V_TMP}")
    for i in range(16):
        k(f"v_sub_f32 v{S0 + i}, v{S0 + i}, v{V_MX}")
        k(f"v_sub_f32 v{V_NEGM + i}, 0, v{V_MX}")
    k(f"v_mov_b32 v{V_L}, 0")
    k("s_barrier")
    k.vm_q = []

    slow_list = []
    gen_iter(k, 0, True, slow_list)
    k(f"s_mov_b32 s{S_CNT}, 21")
    if 'stamp' in ABL:
        k("s_memtime s[54:55]")
        k("s_memrealtime s[56:57]")
        k("s_waitcnt lgkmcnt(0)")
    k.label("L_attn_loop")
    for j3 in (1, 2, 0):
        gen_iter(k, j3, False, slow_list)
    k(f"s_sub_u32 s{S_CNT}, s{S_CNT}, 1")
    k(f"s_cmp_lg_u32 s{S_CNT}, 0")
    k("s_cbranch_scc1 L_attn_loop")
    if 'stamp' in ABL:
        k("s_memtime s[58:59]")
        k("s_memrealtime s[60:61]")
        k("s_waitcnt lgkmcnt(0)")
    for i in range(12, 16):
        k(pv_mfma(i))
    k(f"v_mov_b32 v{V_TMP}, v{V_L}")
    k("s_nop 1")
    k(f"v_permlane32_swap_b32 v{V_TMP}, v{V_L}")
    k("s_nop 1")
    k(f"v_add_f32 v{V_L}, v{V_L}, v{V_TMP}")
    k(f"v_rcp_f32 v{V_ALPHA}, v{V_L}")
    k("s_nop 15")
    k("s_nop 3")
    for dt in range(8):
        T0 = V_S[dt & 1]
        PK = V_VF + 8 * dt
        for r in range(16):
            k(f"v_accvgpr_read_b32 v{T0 + r}, a{A_O + 16 * dt + r}")
        for r in range(16):
            k(f"v_mul_f32 v{T0 + r}, v{V_ALPHA}, v{T0 + r}")
        for i in range(8):
            k(f"v_cvt_pk_bf16_f32 v{PK + i}, v{T0 + 2 * i}, v{T0 + 2 * i + 1}")
        k("s_nop 1")
        for a, b in ((0, 2), (1, 3), (4, 6), (5, 7)):
            k(f"v_permlane32_swap_b32 v{PK + a}, v{PK + b}")
        k("s_nop 1")
        k(f"buffer_store_dwordx4 {vr(PK, 4)}, v4, {sr(S_O, 4)}, 0 offen offset:{64 * dt}")
        k(f"buffer_store_dwordx4 {vr(PK + 4, 4)}, v4, {sr(S_O, 4)}, 0 offen offset:{64 * dt + 32}")
    if 'stamp' in ABL:
        k("s_waitcnt vmcnt(0)")
        k("s_memtime s[62:63]")
        k("s_memrealtime s[64:65]")
        k("s_waitcnt lgkmcnt(0)")
        k("s_cmp_lg_u32 s2, 0")
        k("s_cbranch_scc1 L_attn_done")
        k("s_cmp_lg_u32 s3, 0")
        k("s_cbranch_scc1 L_attn_done")
        make_srd(k, 68, 66, 256)
        k("v_mov_b32 v5, 0")
        for i in range(8):
            k(f"v_mov_b32 v6, s{50 + 2 * i}")
            k(f"buffer_store_dword v6, v5, s[68:71], 0 offen offset:{4 * i}")
    k("s_endpgm")
    for slow, back, cur, nxt in slow_list:
        gen_slow(k, slow, back, cur, nxt)
    k.label("L_attn_done")
    k("s_endpgm")
    return k.text(), dict(vgpr=512, sgpr=80, accum=256)
```

```python
from asmlib import *
from layout import *
from k_ln import round_bf16


def mfma(d, a, b, c):
    return f"v_mfma_f32_32x32x16_bf16 {d}, {a}, {b}, {c}"


def gen_fin():
    name = "fin"
    k = Kern(name)
    RB = 128
    CH = 32 * RB
    R = 4
    S_XO, S_XU, S_WO, S_WU = 16, 20, 24, 28
    S_WOFF, S_XOFF, S_BN, S_BM, S_CNT, S_RING = 36, 37, 38, 39, 40, 41
    V_L31, V_H = 2, 3
    V_WA, V_DW, V_XA = 8, 12, 16
    V_XF = 24
    V_WF = 88
    V_ACC = 104
    V_T = 232
    k("s_cmp_ge_u32 s2, 224")
    k("s_cbranch_scc1 L_fin_done")
    k("s_load_dwordx2 s[10:11], s[0:1], 96")
    k("s_load_dwordx2 s[4:5], s[0:1], 32")
    k("s_load_dwordx2 s[6:7], s[0:1], 72")
    k("s_load_dwordx2 s[8:9], s[0:1], 0")
    k("s_load_dwordx2 s[12:13], s[0:1], 80")
    magic = (1 << 32) // 7 + 1
    k(f"s_mov_b32 s14, {magic}")
    k(f"s_mul_hi_u32 s{S_BM}, s2, s14")
    k(f"s_mul_i32 s14, s{S_BM}, 7")
    k(f"s_sub_u32 s{S_BN}, s2, s14")
    k("v_and_b32 v1, 63, v0")
    k(f"v_and_b32 v{V_L31}, 31, v0")
    k(f"v_bfe_u32 v{V_H}, v0, 5, 1")
    k("v_lshrrev_b32 v4, 6, v0")
    k("s_nop 0")
    k("v_readfirstlane_b32 s3, v4")
    k("s_nop 3")
    k(f"s_lshl_b32 s{S_RING}, s3, 14")
    k("s_waitcnt lgkmcnt(0)")
    make_srd(k, S_XO, 10, 2048 * 8192, add_lo=WS_O)
    make_srd(k, S_XU, 10, 2048 * 1792, add_lo=WS_U)
    make_srd(k, S_WO, 4, 4096 * 896)
    make_srd(k, S_WU, 6, 896 * 896)
    k("v_bfe_u32 v5, v1, 2, 2")
    k("v_and_b32 v6, 3, v1")
    k("v_bfe_u32 v7, v1, 4, 1")
    k("v_lshlrev_b32 v17, 3, v6")
    k("v_lshl_add_u32 v17, v7, 5, v17")
    k(f"v_lshl_add_u32 v18, v{V_H}, 3, v5")
    k("v_lshl_add_u32 v17, v18, 7, v17")
    k(f"v_add_u32 v17, s{S_RING}, v17")
    k("v_lshrrev_b32 v6, 1, v5")
    for d in range(2):
        k(f"v_xor_b32 v7, {d}, v6")
        k(f"v_lshl_add_u32 v{V_WA + d}, v7, 6, v17")
    k("v_lshrrev_b32 v5, 3, v1")
    k("v_and_b32 v6, 7, v1")
    for i in range(4):
        k(f"v_add_u32 v7, {8 * i}, v5")
        k("v_bfe_u32 v17, v7, 1, 1")
        k("v_lshlrev_b32 v17, 2, v17")
        k("v_xor_b32 v17, v17, v6")
        k("v_mul_u32_u24 v7, 896, v7")
        k(f"v_lshl_add_u32 v{V_DW + i}, v17, 4, v7")
    k(f"s_lshl_b32 s15, s{S_BM}, 6")
    k(f"v_add_u32 v4, s15, v{V_L31}")

    def phase(S_X, S_W, xstride, kper, nch, acc):
        k(f"s_mov_b32 s14, {xstride}")
        k(f"v_mul_lo_u32 v{V_XA}, v4, s14")
        k(f"v_lshl_add_u32 v{V_XA}, v{V_H}, 4, v{V_XA}")
        k(f"v_add_u32 v{V_XA + 1}, {32 * xstride}, v{V_XA}")
        k(f"s_mul_i32 s{S_XOFF}, s3, {kper * 2}")
        k(f"s_mul_i32 s{S_WOFF}, s3, {kper * 896}")
        k(f"s_lshl_b32 s14, s{S_BN}, 7")
        k(f"s_add_u32 s{S_WOFF}, s{S_WOFF}, s14")

        def prefetch(slot):
            for mt in range(2):
                for ks in range(2):
                    k(f"buffer_load_dwordx4 {vr(V_XF + 16 * slot + 8 * mt + 4 * ks, 4)}, v{V_XA + mt}, {sr(S_X, 4)}, s{S_XOFF} offen offset:{32 * ks}")
            k(f"s_add_u32 s{S_XOFF}, s{S_XOFF}, 64")
            for i in range(4):
                k(f"s_add_u32 m0, s{S_RING}, {slot * CH + 1024 * i}")
                k("s_nop 0")
                k(f"buffer_load_dwordx4 v{V_DW + i}, {sr(S_W, 4)}, s{S_WOFF} offen lds")
            k(f"s_add_u32 s{S_WOFF}, s{S_WOFF}, {32 * 896}")

        def chunk(slot, first, pre):
            k("s_waitcnt vmcnt(16)")
            for ks in range(2):
                for nt in range(2):
                    i = ks * 2 + nt
                    for u in range(2):
                        off = slot * CH + (16 * ks + 4 * u) * RB
                        k.ds(f"ds_read_b64_tr_b16 {vr(V_WF + 4 * i + 2 * u, 2)}, v{V_WA + nt} offset:{off}", ("w", i))
            for ks in range(2):
                for nt in range(2):
                    i = ks * 2 + nt
                    k.ds_wait([("w", i)])
                    for mt in range(2):
                        o = vr(acc + 16 * (2 * mt + nt), 16)
                        c_ = "0" if (first and ks == 0) else o
                        k(mfma(o, vr(V_WF + 4 * i, 4), vr(V_XF + 16 * slot + 8 * mt + 4 * ks, 4), c_))
            if pre:
                prefetch((slot + 3) % R)

        for s in range(3):
            prefetch(s)
        if nch % 4 == 0 and nch > 8:
            for s in range(4):
                chunk(s, s == 0, True)
            k(f"s_mov_b32 s{S_CNT}, {nch // 4 - 1}")
            lp = k.newlabel("loop")
            k.label(lp)
            for s in range(4):
                chunk(s, False, True)
            k(f"s_sub_u32 s{S_CNT}, s{S_CNT}, 1")
            k(f"s_cmp_lg_u32 s{S_CNT}, 0")
            k(f"s_cbranch_scc1 {lp}")
        else:
            for c in range(nch):
                chunk(c % 4, c == 0, True)
        k("s_waitcnt vmcnt(0)")

    phase(S_XO, S_WO, 8192, 1024, 32, V_ACC)
    phase(S_XU, S_WU, 1792, 224, 7, V_ACC + 64)
    k("s_nop 15")
    k("s_nop 3")
    k("v_lshlrev_b32 v5, 4, v1")
    k(f"v_add_u32 v6, s{S_RING}, v5")
    k("s_lshl_b32 s14, s3, 12")
    k("v_add_u32 v7, s14, v5")
    RES = [V_XF, V_XF + 16]
    for rnd in range(2):
        A = V_ACC + 64 * rnd
        k("s_barrier")
        for t in range(4):
            for q in range(4):
                k(f"ds_write_b128 v6, {vr(A + 16 * t + 4 * q, 4)} offset:{t * 4096 + q * 1024}")
        k("s_waitcnt lgkmcnt(0)")
        k("s_barrier")
        for w in range(4):
            for q in range(4):
                k(f"ds_read_b128 {vr(A + 16 * w + 4 * q, 4)}, v7 offset:{w * 16384 + q * 1024}")
        k("s_waitcnt lgkmcnt(0)")
        for r in range(16):
            k(f"v_add_f32 v{RES[rnd] + r}, v{A + r}, v{A + 16 + r}")
            k(f"v_add_f32 v{V_T}, v{A + 32 + r}, v{A + 48 + r}")
            k(f"v_add_f32 v{RES[rnd] + r}, v{RES[rnd] + r}, v{V_T}")
    make_srd(k, 16, 8, 2048 * 896)
    make_srd(k, 20, 12, 2048 * 896)
    k("s_lshr_b32 s14, s3, 1")
    k("s_lshl_b32 s14, s14, 5")
    k("v_add_u32 v4, s14, v4")
    k("s_and_b32 s14, s3, 1")
    k("s_lshl_b32 s14, s14, 6")
    k(f"s_lshl_b32 s15, s{S_BN}, 7")
    k("s_add_u32 s14, s14, s15")
    k("v_mul_u32_u24 v5, 896, v4")
    k("v_add_u32 v5, s14, v5")
    k(f"v_lshl_add_u32 v5, v{V_H}, 3, v5")
    XR = V_ACC
    for q in range(4):
        k(f"buffer_load_dwordx2 {vr(XR + 2 * q, 2)}, v5, s[16:19], 0 offen offset:{16 * q}")
    k("s_waitcnt vmcnt(0)")
    S, T = RES
    for q in range(4):
        for j in range(4):
            r = 4 * q + j
            round_bf16(k, S + r, S + r)
            round_bf16(k, T + r, T + r)
            k(f"v_mul_f32 v{V_T}, 0xbfb8aa3b, v{T + r}")
            k(f"v_exp_f32 v{V_T}, v{V_T}")
            k("s_nop 0")
            k(f"v_add_f32 v{V_T}, 1.0, v{V_T}")
            k(f"v_rcp_f32 v{V_T}, v{V_T}")
            k("s_nop 0")
            k(f"v_mul_f32 v{T + r}, v{T + r}, v{V_T}")
            round_bf16(k, T + r, T + r)
            k(f"v_mul_f32 v{S + r}, v{S + r}, v{T + r}")
            round_bf16(k, S + r, S + r)
            if j & 1:
                k(f"v_and_b32 v{V_T}, 0xffff0000, v{XR + 2 * q + (j >> 1)}")
            else:
                k(f"v_lshlrev_b32 v{V_T}, 16, v{XR + 2 * q + (j >> 1)}")
            k(f"v_add_f32 v{S + r}, v{S + r}, v{V_T}")
        k(f"v_cvt_pk_bf16_f32 v{V_T + 2}, v{S + 4 * q}, v{S + 4 * q + 1}")
        k(f"v_cvt_pk_bf16_f32 v{V_T + 3}, v{S + 4 * q + 2}, v{S + 4 * q + 3}")
        k(f"buffer_store_dwordx2 {vr(V_T + 2, 2)}, v5, s[20:23], 0 offen offset:{16 * q}")
        k("s_nop 1")
    k.label("L_fin_done")
    k("s_endpgm")
    return k.text(), dict(vgpr=240, sgpr=64, accum=240)
```

```python
from asmlib import *
from layout import *
from k_ln import round_bf16


def mfma(d, a, b, c):
    return f"v_mfma_f32_32x32x16_bf16 {d}, {a}, {b}, {c}"


def gen_gemm_a(name, NT, K, nblk_n, nblk_m, x_src, x_stride, w_src, w_stride, epilogue, nslots=3):
    k = Kern(name)
    RB = 64 * NT
    CH = 64 * RB
    PPW = CH // 1024 // 4
    LPR = RB // 16
    RPP = 1024 // RB
    NCH = K // 64
    nwg = nblk_n * nblk_m
    S_X, S_W = 16, 20
    S_WOFF, S_XOFF, S_BN, S_BM, S_CNT = 36, 37, 38, 39, 40
    S_M0 = 42
    V_L31, V_H = 2, 3
    V_WA, V_DW, V_XA = 8, 12, 16
    V_XF = 24
    V_WF = 64
    V_ACC = V_WF + 16 * NT
    V_T = V_ACC + 16 * NT
    nv = V_T + 24
    done = f"L_{name}_done"
    k(f"s_cmp_ge_u32 s2, {nwg}")
    k(f"s_cbranch_scc1 {done}")
    k("s_load_dwordx2 s[10:11], s[0:1], 96")
    if x_src[0] == 'arg':
        k(f"s_load_dwordx2 s[4:5], s[0:1], {x_src[1]}")
    if w_src[0] == 'arg':
        k(f"s_load_dwordx2 s[6:7], s[0:1], {w_src[1]}")
    k("s_load_dwordx2 s[8:9], s[0:1], 64")
    magic = (1 << 32) // nblk_n + 1
    k(f"s_mov_b32 s14, {magic}")
    k(f"s_mul_hi_u32 s{S_BM}, s2, s14")
    k(f"s_mul_i32 s14, s{S_BM}, {nblk_n}")
    k(f"s_sub_u32 s{S_BN}, s2, s14")
    k(f"v_and_b32 v1, 63, v0")
    k(f"v_and_b32 v{V_L31}, 31, v0")
    k(f"v_bfe_u32 v{V_H}, v0, 5, 1")
    k("v_lshrrev_b32 v4, 6, v0")
    k("s_nop 0")
    k("v_readfirstlane_b32 s3, v4")
    k("s_nop 3")
    k(f"s_mul_i32 s14, s3, {PPW * 1024}")
    for i in range(nslots):
        k(f"s_add_u32 s{S_M0 + i}, s14, {i * CH}")
    k("s_waitcnt lgkmcnt(0)")
    if x_src[0] == 'arg':
        make_srd(k, S_X, 4, x_src[2])
    else:
        make_srd(k, S_X, 10, x_src[2], add_lo=x_src[1])
    if w_src[0] == 'arg':
        make_srd(k, S_W, 6, w_src[2])
    else:
        make_srd(k, S_W, 10, w_src[2], add_lo=w_src[1])
    k("v_bfe_u32 v5, v1, 2, 2")
    k("v_and_b32 v6, 3, v1")
    k("v_bfe_u32 v7, v1, 4, 1")
    k("v_lshlrev_b32 v17, 3, v6")
    k("v_lshl_add_u32 v17, v7, 5, v17")
    k(f"v_lshl_add_u32 v18, v{V_H}, 3, v5")
    k(f"v_mul_u32_u24 v18, {RB}, v18")
    k("v_add_u32 v17, v17, v18")
    if NT >= 4:
        nsw = 4
        for d in range(4):
            k(f"v_xor_b32 v7, {d}, v5")
            k(f"v_lshl_add_u32 v{V_WA + d}, v7, 6, v17")
    else:
        nsw = 2
        k("v_lshrrev_b32 v6, 1, v5")
        for d in range(2):
            k(f"v_xor_b32 v7, {d}, v6")
            k(f"v_lshl_add_u32 v{V_WA + d}, v7, 6, v17")
    sh = {16: 4, 8: 3}[LPR]
    k(f"v_lshrrev_b32 v5, {sh}, v1")
    k(f"v_and_b32 v6, {LPR - 1}, v1")
    k(f"s_mul_i32 s14, s3, {PPW * RPP}")
    k("v_add_u32 v5, s14, v5")
    for i in range(PPW):
        k(f"v_add_u32 v7, {i * RPP}, v5")
        if NT >= 4:
            k("v_and_b32 v17, 3, v7")
            k("v_lshlrev_b32 v17, 2, v17")
        else:
            k("v_bfe_u32 v17, v7, 1, 1")
            k("v_lshlrev_b32 v17, 2, v17")
        k("v_xor_b32 v17, v17, v6")
        k(f"s_mov_b32 s14, {w_stride}")
        k("v_mul_lo_u32 v7, v7, s14")
        k(f"v_lshl_add_u32 v{V_DW + i}, v17, 4, v7")
    k(f"s_mul_i32 s{S_WOFF}, s{S_BN}, {RB}")
    k(f"s_lshl_b32 s14, s{S_BM}, 7")
    k("s_lshl_b32 s15, s3, 5")
    k("s_add_u32 s14, s14, s15")
    k(f"v_add_u32 v4, s14, v{V_L31}")
    k(f"s_mov_b32 s14, {x_stride}")
    k(f"v_mul_lo_u32 v{V_XA}, v4, s14")
    k(f"v_lshl_add_u32 v{V_XA}, v{V_H}, 4, v{V_XA}")
    k(f"s_mov_b32 s{S_XOFF}, 0")

    def w_dma(slot, tag):
        for i in range(PPW):
            k(f"s_add_u32 m0, s{S_M0 + slot}, {1024 * i}")
            k("s_nop 0")
            k.vm(f"buffer_load_dwordx4 v{V_DW + i}, {sr(S_W, 4)}, s{S_WOFF} offen lds", tag)
        k(f"s_add_u32 s{S_WOFF}, s{S_WOFF}, {64 * w_stride}")

    def x_load(buf, tag):
        for ks in range(4):
            k.vm(f"buffer_load_dwordx4 {vr(V_XF + 16 * buf + 4 * ks, 4)}, v{V_XA}, {sr(S_X, 4)}, s{S_XOFF} offen offset:{32 * ks}", tag)
        k(f"s_add_u32 s{S_XOFF}, s{S_XOFF}, 128")

    def chunk(c, slot, buf, first, more_w, more_x):
        k("s_barrier")
        if more_x:
            x_load(buf ^ 1, "x")
        if more_w:
            w_dma((slot + nslots - 1) % nslots, "w")
        for ks in range(4):
            for nt in range(NT):
                i = ks * NT + nt
                for u in range(2):
                    off = slot * CH + (16 * ks + 4 * u) * RB + (nt // nsw) * 256
                    k.ds(f"ds_read_b64_tr_b16 {vr(V_WF + 4 * i + 2 * u, 2)}, v{V_WA + (nt % nsw)} offset:{off}", ("w", i))
        for ks in range(4):
            for nt in range(NT):
                i = ks * NT + nt
                k.ds_wait([("w", i)])
                o = vr(V_ACC + 16 * nt, 16)
                c_ = "0" if (first and ks == 0) else o
                k(mfma(o, vr(V_WF + 4 * i, 4), vr(V_XF + 16 * buf + 4 * ks, 4), c_))

    x_load(0, "x")
    for s in range(nslots - 1):
        w_dma(s, "w")
    per = PPW + 4
    unroll = 6 if nslots == 3 else nslots
    assert nslots == 3
    if NCH <= 8:
        for c in range(NCH):
            k(f"s_waitcnt vmcnt({PPW if c + 1 < NCH else 0})")
            chunk(c, c % nslots, c & 1, c == 0, c + nslots - 1 < NCH, c + 1 < NCH)
    else:
        assert (NCH - 2) % unroll == 0
        k(f"s_waitcnt vmcnt({PPW})")
        chunk(0, 0, 0, True, True, True)
        k(f"s_mov_b32 s{S_CNT}, {(NCH - 2) // unroll}")
        lp = f"L_{name}_loop"
        k.label(lp)
        for j in range(1, unroll + 1):
            k(f"s_waitcnt vmcnt({PPW})")
            chunk(j, j % nslots, j & 1, False, True, True)
        k(f"s_sub_u32 s{S_CNT}, s{S_CNT}, 1")
        k(f"s_cmp_lg_u32 s{S_CNT}, 0")
        k(f"s_cbranch_scc1 {lp}")
        k(f"s_waitcnt vmcnt({PPW})")
        chunk(NCH - 1, (unroll + 1) % nslots, (unroll + 1) & 1, False, False, False)
    k("s_nop 15")
    k("s_nop 3")
    epilogue(k, dict(V_ACC=V_ACC, V_T=V_T, NT=NT, S_BN=S_BN, S_BM=S_BM, V_H=V_H, V_L31=V_L31, V_ROW=4, V_WF=V_WF))
    k.label(done)
    k("s_endpgm")
    nv = (nv + 7) // 8 * 8
    return k.text(), dict(vgpr=nv, sgpr=64, accum=nv)


def gelu_ops(k, x, t):
    k(f"v_mul_f32 v{t}, v{x}, v{x}")
    k(f"v_mov_b32 v{t + 1}, 1.0")
    k(f"v_fmac_f32 v{t + 1}, 0x3d372713, v{t}")
    k(f"v_mul_f32 v{t}, v{t + 1}, v{x}")
    k(f"v_mul_f32 v{t}, 0xc0135761, v{t}")
    k(f"v_exp_f32 v{t}, v{t}")
    k("s_nop 0")
    k(f"v_add_f32 v{t}, 1.0, v{t}")
    k(f"v_rcp_f32 v{t}, v{t}")
    k("s_nop 0")
    k(f"v_mul_f32 v{x}, v{x}, v{t}")


def epi_g1(k, c):
    A, T, NT = c["V_ACC"], c["V_T"], c["NT"]
    k(f"s_cmp_ge_u32 s{c['S_BN']}, 7")
    k(f"s_cselect_b32 s14, {WS_Z2 - WS_Z1}, 0")
    k(f"s_add_u32 s14, s14, {WS_Z1}")
    k(f"s_cmp_ge_u32 s{c['S_BN']}, 7")
    k(f"s_cselect_b32 s15, 7, 0")
    k(f"s_sub_u32 s15, s{c['S_BN']}, s15")
    k("s_lshl_b32 s15, s15, 8")
    k("s_add_u32 s24, s10, s14")
    k("s_addc_u32 s25, s11, 0")
    k(f"s_mov_b32 s26, {2048 * 1792}")
    k("s_mov_b32 s27, 0x00020000")
    k(f"v_mul_u32_u24 v5, 1792, v{c['V_ROW']}")
    k("v_add_u32 v5, s15, v5")
    k(f"v_lshl_add_u32 v5, v{c['V_H']}, 3, v5")
    for nt in range(NT):
        for q in range(4):
            r0 = A + 16 * nt + 4 * q
            for j in range(4):
                round_bf16(k, r0 + j, r0 + j)
                gelu_ops(k, r0 + j, T)
            k(f"v_cvt_pk_bf16_f32 v{T + 4}, v{r0}, v{r0 + 1}")
            k(f"v_cvt_pk_bf16_f32 v{T + 5}, v{r0 + 2}, v{r0 + 3}")
            k(f"buffer_store_dwordx2 {vr(T + 4, 2)}, v5, s[24:27], 0 offen offset:{64 * nt + 16 * q}")
            k("s_nop 1")


def epi_g2(k, c):
    A, T, NT = c["V_ACC"], c["V_T"], c["NT"]
    make_srd(k, 24, 10, 2048 * 1792, add_lo=WS_Z1)
    make_srd(k, 28, 10, 2048 * 1792, add_lo=WS_U)
    make_srd(k, 32, 8, 4096)
    k(f"v_lshlrev_b32 v6, 1, v{c['V_ROW']}")
    k("buffer_load_ushort v7, v6, s[32:35], 0 offen")
    k(f"s_mul_i32 s15, s{c['S_BN']}, {64 * NT}")
    k(f"v_mul_u32_u24 v5, 1792, v{c['V_ROW']}")
    k("v_add_u32 v5, s15, v5")
    k(f"v_lshl_add_u32 v5, v{c['V_H']}, 3, v5")
    Z = c["V_WF"]
    for nt in range(NT):
        for q in range(4):
            k(f"buffer_load_dwordx2 {vr(Z + 2 * (4 * nt + q), 2)}, v5, s[24:27], 0 offen offset:{64 * nt + 16 * q}")
    k("s_waitcnt vmcnt(0)")
    k("v_lshlrev_b32 v7, 16, v7")
    for nt in range(NT):
        for q in range(4):
            r0 = A + 16 * nt + 4 * q
            z = Z + 2 * (4 * nt + q)
            for j in range(4):
                round_bf16(k, r0 + j, r0 + j)
                k(f"v_add_f32 v{r0 + j}, v{r0 + j}, v7")
                round_bf16(k, r0 + j, r0 + j)
                if j & 1:
                    k(f"v_and_b32 v{T}, 0xffff0000, v{z + (j >> 1)}")
                else:
                    k(f"v_lshlrev_b32 v{T}, 16, v{z + (j >> 1)}")
                k(f"v_mul_f32 v{r0 + j}, v{r0 + j}, v{T}")
            k(f"v_cvt_pk_bf16_f32 v{T + 4}, v{r0}, v{r0 + 1}")
            k(f"v_cvt_pk_bf16_f32 v{T + 5}, v{r0 + 2}, v{r0 + 3}")
            k(f"buffer_store_dwordx2 {vr(T + 4, 2)}, v5, s[28:31], 0 offen offset:{64 * nt + 16 * q}")
            k("s_nop 1")


def gen_g1():
    return gen_gemm_a("g1", 4, 448, 14, 16, ('ws', WS_XN, 2048 * 896), 896, ('arg', 48, 448 * 3584), 3584, epi_g1)


def gen_g2():
    return gen_gemm_a("g2", 2, 2048, 14, 16, ('arg', 56, 2048 * 4096), 4096, ('ws', WS_Z2, 2048 * 1792), 1792, epi_g2)
```

```python
from asmlib import *
from layout import *


def wave_allreduce_add(k, v, t):
    for m in (1, 2, 4, 8, 16):
        k(f"ds_swizzle_b32 v{t}, v{v} offset:{(m << 10) | 0x1F}")
        k("s_waitcnt lgkmcnt(0)")
        k(f"v_add_f32 v{v}, v{v}, v{t}")
    k(f"v_mov_b32 v{t}, v{v}")
    k("s_nop 1")
    k(f"v_permlane32_swap_b32 v{t}, v{v}")
    k("s_nop 1")
    k(f"v_add_f32 v{v}, v{v}, v{t}")


def round_bf16(k, dst, src):
    k(f"v_cvt_pk_bf16_f32 v{dst}, v{src}, v{src}")
    k(f"v_and_b32 v{dst}, 0xffff0000, v{dst}")


def gen_ln():
    k = Kern("ln")
    k("s_cmp_ge_u32 s2, 512")
    k("s_cbranch_scc1 L_ln_done")
    k("s_load_dwordx2 s[4:5], s[0:1], 0")
    k("s_load_dwordx2 s[6:7], s[0:1], 96")
    k("v_lshrrev_b32 v1, 6, v0")
    k("v_and_b32 v2, 63, v0")
    k("s_lshl_b32 s3, s2, 2")
    k("v_add_u32 v1, s3, v1")
    k("v_mul_u32_u24 v3, 896, v1")
    k("v_lshl_add_u32 v3, v2, 4, v3")
    k("v_cmp_gt_u32 vcc, 56, v2")
    k("v_mov_b32 v4, 0x7ffffff0")
    k("s_nop 1")
    k("v_cndmask_b32 v3, v4, v3, vcc")
    k("s_waitcnt lgkmcnt(0)")
    make_srd(k, 8, 4, 2048 * 896)
    make_srd(k, 12, 6, 2048 * 896, add_lo=WS_XN)
    k("buffer_load_dwordx4 v[8:11], v3, s[8:11], 0 offen")
    k("s_waitcnt vmcnt(0)")
    for i in range(4):
        k(f"v_lshlrev_b32 v{16 + 2 * i}, 16, v{8 + i}")
        k(f"v_and_b32 v{17 + 2 * i}, 0xffff0000, v{8 + i}")
    k("v_add_f32 v5, v16, v17")
    for i in range(2, 8):
        k(f"v_add_f32 v5, v5, v{16 + i}")
    wave_allreduce_add(k, 5, 6)
    k("v_mul_f32 v5, 0x3b124925, v5")
    k("v_mov_b32 v7, 0")
    for i in range(8):
        k(f"v_sub_f32 v24, v{16 + i}, v5")
        k("v_fmac_f32 v7, v24, v24")
    k("v_cndmask_b32 v7, 0, v7, vcc")
    wave_allreduce_add(k, 7, 6)
    k("v_mul_f32 v7, 0x3b124925, v7")
    round_bf16(k, 5, 5)
    round_bf16(k, 7, 7)
    k("v_add_f32 v7, 0x3727c5ac, v7")
    round_bf16(k, 7, 7)
    k("v_sqrt_f32 v7, v7")
    k("s_nop 0")
    round_bf16(k, 7, 7)
    k("v_rcp_f32 v7, v7")
    k("s_nop 0")
    for i in range(4):
        k(f"v_sub_f32 v24, v{16 + 2 * i}, v5")
        k(f"v_sub_f32 v25, v{17 + 2 * i}, v5")
        k("v_cvt_pk_bf16_f32 v26, v24, v25")
        k("v_lshlrev_b32 v24, 16, v26")
        k("v_and_b32 v25, 0xffff0000, v26")
        k("v_mul_f32 v24, v24, v7")
        k("v_mul_f32 v25, v25, v7")
        k(f"v_cvt_pk_bf16_f32 v{8 + i}, v24, v25")
    k("buffer_store_dwordx4 v[8:11], v3, s[12:15], 0 offen")
    k.label("L_ln_done")
    k("s_endpgm")
    return k.text(), dict(vgpr=32, sgpr=24, accum=32)


def gen_ln2():
    k = Kern("ln2")
    k("s_cmp_ge_u32 s2, 512")
    k("s_cbranch_scc1 L_ln2_done")
    k("s_load_dwordx2 s[6:7], s[0:1], 96")
    k("v_lshrrev_b32 v1, 6, v0")
    k("v_and_b32 v2, 63, v0")
    k("s_lshl_b32 s3, s2, 2")
    k("v_add_u32 v1, s3, v1")
    k("v_mul_u32_u24 v3, 1792, v1")
    k("v_lshl_add_u32 v3, v2, 4, v3")
    k("v_cmp_gt_u32 vcc, 56, v2")
    k("v_mov_b32 v4, 0x7ffffff0")
    k("s_nop 1")
    k("v_cndmask_b32 v3, v4, v3, vcc")
    k("s_waitcnt lgkmcnt(0)")
    make_srd(k, 12, 6, 2048 * 1792, add_lo=WS_Z2)
    k("buffer_load_dwordx4 v[8:11], v3, s[12:15], 0 offen")
    k("buffer_load_dwordx4 v[12:15], v3, s[12:15], 0 offen offset:896")
    k("s_waitcnt vmcnt(0)")
    for i in range(8):
        k(f"v_lshlrev_b32 v{16 + 2 * i}, 16, v{8 + i}")
        k(f"v_and_b32 v{17 + 2 * i}, 0xffff0000, v{8 + i}")
    k("v_add_f32 v5, v16, v17")
    for i in range(2, 16):
        k(f"v_add_f32 v5, v5, v{16 + i}")
    wave_allreduce_add(k, 5, 6)
    k("v_mul_f32 v5, 0x3a924925, v5")
    k("v_mov_b32 v7, 0")
    for i in range(16):
        k(f"v_sub_f32 v34, v{16 + i}, v5")
        k("v_fmac_f32 v7, v34, v34")
    k("v_cndmask_b32 v7, 0, v7, vcc")
    wave_allreduce_add(k, 7, 6)
    k("v_mul_f32 v7, 0x3a924925, v7")
    round_bf16(k, 5, 5)
    round_bf16(k, 7, 7)
    k("v_add_f32 v7, 0x3727c5ac, v7")
    round_bf16(k, 7, 7)
    k("v_sqrt_f32 v7, v7")
    k("s_nop 0")
    round_bf16(k, 7, 7)
    k("v_rcp_f32 v7, v7")
    k("s_nop 0")
    for i in range(8):
        k(f"v_sub_f32 v34, v{16 + 2 * i}, v5")
        k(f"v_sub_f32 v35, v{17 + 2 * i}, v5")
        k("v_cvt_pk_bf16_f32 v36, v34, v35")
        k("v_lshlrev_b32 v34, 16, v36")
        k("v_and_b32 v35, 0xffff0000, v36")
        k("v_mul_f32 v34, v34, v7")
        k("v_mul_f32 v35, v35, v7")
        k(f"v_cvt_pk_bf16_f32 v{8 + i}, v34, v35")
    k("buffer_store_dwordx4 v[8:11], v3, s[12:15], 0 offen")
    k("buffer_store_dwordx4 v[12:15], v3, s[12:15], 0 offen offset:896")
    k.label("L_ln2_done")
    k("s_endpgm")
    return k.text(), dict(vgpr=40, sgpr=24, accum=40)
```

```python
import sys, os
sys.path.insert(0, os.path.dirname(__file__))
from asmlib import *
import k_ln, k_attn, k_gemm, k_fin

HEADER = open(os.path.join(os.path.dirname(__file__), "..", "cdna_kernels",
    "recurrent_scan__mha_block_cached__mixer_gmlp__prompt.s.ref")).read().split("; Override launch")[0]

def build(kernels, out):
    s = HEADER
    for name, fn, grid, block, lds in kernels:
        s += f"; @launch kernel={name} grid=({grid},1,1) block=({block},1,1) lds={lds}\n"
    s += '.amdgcn_target "amdgcn-amd-amdhsa--gfx950"\n.text\n'
    descs = ""
    seen = set()
    for name, fn, grid, block, lds in kernels:
        if name in seen: continue
        seen.add(name)
        body, res = fn()
        s += kernel_header(name) + body
        descs += kernel_desc(name, res["vgpr"], res["sgpr"], res["accum"])
    s += '.section .rodata,"a"\n' + descs
    open(out, "w").write(s)

KERNELS = [
    ("ln_kernel", k_ln.gen_ln, 512, 256, 0),
    ("g1_kernel", k_gemm.gen_g1, 224, 256, 49152),
    ("ln2_kernel", k_ln.gen_ln2, 512, 256, 0),
    ("g2_kernel", k_gemm.gen_g2, 224, 256, 24576),
    ("attn_kernel", k_attn.gen_attn, 256, 256, 98304),
    ("fin_kernel", k_fin.gen_fin, 224, 256, 65536),
]

if __name__ == "__main__":
    out = sys.argv[1] if len(sys.argv) > 1 else os.path.join(os.path.dirname(__file__), "..", "cdna_kernels",
        "recurrent_scan__mha_block_cached__mixer_gmlp__prompt.s")
    build(KERNELS, out)
    print("wrote", out)
```

```python
from asmlib import *
from layout import *
import os
ABL = os.environ.get('ABL', '').split(',')

S_K, S_V, S_WQ, S_XN, S_O = 16, 20, 24, 28, 32
S_KOFF, S_VOFF, S_CNT, S_WOFF, S_W4K = 36, 37, 38, 39, 40
S_M0K, S_M0V = 42, 45
S_HEAD, S_QB, S_OB = 12, 13, 48
V_LANE, V_L31, V_H = 1, 2, 3
V_KA, V_VA, V_WA, V_DK, V_DV, V_DW = 8, 16, 20, 24, 28, 30
V_L, V_TS, V_SA, V_SB, V_E, V_MX, V_TMP, V_ALPHA = 34, 35, 36, 37, 38, 42, 43, 44
V_P = 48
V_NEGM = 64
V_S = [80, 96, 112]
V_VF = 128
V_XN = 128
A_O, A_Q, A_KF = 0, 128, 192

LDS_K, LDS_V = 0, 49152
SLOT = 16384
QSCALE = 0x3db8aa3b
THRESH = 0x44800000


def mfma(d, a, b, c):
    return f"v_mfma_f32_32x32x16_bf16 {d}, {a}, {b}, {c}"


def softmax_ops(T):
    ops = []
    E = V_E

    def exps(i):
        e = E + 2 * (i & 1)
        return [f"v_exp_f32 v{e}, v{T + 2 * i}", f"v_exp_f32 v{e + 1}, v{T + 2 * i + 1}"]

    def post(i):
        e = E + 2 * (i & 1)
        if i == 0:
            o = [f"v_add_f32 v{V_SA}, v{e}, v{e + 1}"]
        elif i == 1:
            o = [f"v_add_f32 v{V_SB}, v{e}, v{e + 1}"]
        else:
            o = [f"v_add_f32 v{V_SA}, v{V_SA}, v{e}", f"v_add_f32 v{V_SB}, v{V_SB}, v{e + 1}"]
        o.append(f"v_cvt_pk_bf16_f32 v{V_P + i}, v{e}, v{e + 1}")
        return o

    ops += exps(0)
    for i in range(1, 8):
        ops += exps(i)
        ops += post(i - 1)
    ops += ["s_nop 0"] + post(7)
    return ops


def k_read(t, slot):
    off = LDS_K + slot * SLOT + (t >> 3) * 256
    return f"ds_read_b128 {ar(A_KF + 4 * t, 4)}, v{V_KA + (t & 7)} offset:{off}"


def v_read(i, u, slot):
    ks, dt = i // 8, i % 8
    off = slot * SLOT + ks * 8192 + u * 4096 + (dt >> 2) * 256
    return f"ds_read_b64_tr_b16 {vr(V_VF + 4 * i + 2 * u, 2)}, v{V_VA + (dt & 3)} offset:{off}"


def pv_mfma(i):
    ks, dt = i // 8, i % 8
    o = ar(A_O + 16 * dt, 16)
    return mfma(o, vr(V_VF + 4 * i, 4), vr(V_P + 4 * ks, 4), o)


def dma_ops(kslot, vslot):
    ops = [f"s_mov_b32 m0, s{S_M0K + kslot}", "s_nop 0"]
    for i in range(4):
        ops.append(f"buffer_load_dwordx4 v{V_DK + i}, {sr(S_K, 4)}, s{S_KOFF} offen offset:{1024 * i} lds")
    ops += [f"s_add_u32 s{S_KOFF}, s{S_KOFF}, {SLOT}", f"s_mov_b32 m0, s{S_M0V + vslot}", "s_nop 0"]
    for i in range(4):
        ops.append(f"buffer_load_dwordx4 v{V_DV + (i & 1)}, {sr(S_V, 4)}, s{S_VOFF} offen offset:{1024 * i} lds")
    ops.append(f"s_add_u32 s{S_VOFF}, s{S_VOFF}, {SLOT}")
    return ops


def gen_slow(k, lab, back, T, N):
    k.label(lab)
    k("s_nop 15")
    k("s_nop 7")
    k(f"v_max3_f32 v{V_MX}, v{T}, v{T + 1}, v{T + 2}")
    for i in range(3, 15, 2):
        k(f"v_max3_f32 v{V_MX}, v{V_MX}, v{T + i}, v{T + i + 1}")
    k(f"v_max_f32 v{V_MX}, v{V_MX}, v{T + 15}")
    k(f"v_mov_b32 v{V_TMP}, v{V_MX}")
    k("s_nop 1")
    k(f"v_permlane32_swap_b32 v{V_TMP}, v{V_MX}")
    k("s_nop 1")
    k(f"v_max_f32 v{V_MX}, v{V_MX}, v{V_TMP}")
    k(f"v_max_f32 v{V_MX}, 0, v{V_MX}")
    k(f"v_sub_f32 v{V_ALPHA}, 0, v{V_MX}")
    k(f"v_exp_f32 v{V_ALPHA}, v{V_ALPHA}")
    for i in range(16):
        k(f"v_sub_f32 v{T + i}, v{T + i}, v{V_MX}")
        k(f"v_sub_f32 v{N + i}, v{N + i}, v{V_MX}")
        k(f"v_sub_f32 v{V_NEGM + i}, v{V_NEGM + i}, v{V_MX}")
    k(f"v_mul_f32 v{V_L}, v{V_L}, v{V_ALPHA}")
    for i in range(128):
        t = V_E + (i & 3)
        k(f"v_accvgpr_read_b32 v{t}, a{A_O + i}")
        k(f"v_mul_f32 v{t}, v{t}, v{V_ALPHA}")
        k(f"v_accvgpr_write_b32 a{A_O + i}, v{t}")
    for o in softmax_ops(T):
        k(o)
    k(f"v_add_f32 v{V_TS}, v{V_SA}, v{V_SB}")
    k("s_nop 3")
    k(f"s_branch {back}")


def gen_iter(k, j3, first, slow_list):
    cur, nxt = V_S[j3], V_S[(j3 + 1) % 3]
    kslot, vslot = (j3 + 1) % 3, j3
    M = []
    if not first:
        for i in range(12, 16):
            M.append((pv_mfma(i), []))
    for t in range(16):
        c = vr(V_NEGM, 16) if t == 0 else vr(nxt, 16)
        M.append((mfma(vr(nxt, 16), ar(A_KF + 4 * t, 4), ar(A_Q + 4 * t, 4), c), [("k", t)]))
    for i in range(12):
        M.append((pv_mfma(i), [("v", i, 0), ("v", i, 1)]))
    nm = len(M)
    q0 = 0 if first else 4
    p0 = q0 + 16
    fill = {g: [] for g in range(-1, nm)}
    for t in range(16):
        g = max(-1, q0 + t - 6)
        fill[g].append(("ds", k_read(t, kslot), ("k", t)))
    sm = softmax_ops(cur)
    for g, ops in spread(nm, sm, -1 if first else 0, p0 - 1).items():
        fill[g] += [("valu", o, None) for o in ops]
    vreads = [(i, u) for i in range(16) for u in range(2)]
    for g, items in spread(nm, vreads, p0 - 7, nm - 2).items():
        fill[g] += [("ds", v_read(i, u, vslot), ("v", i, u)) for (i, u) in items]
    for g, ops in spread(nm, dma_ops(j3, (j3 + 2) % 3), p0, nm - 1).items():
        if 'nodma' in ABL: continue
        fill[g] += [("raw", o, None) for o in ops]
    if 'nosm' in ABL:
        for g in fill: fill[g] = [f for f in fill[g] if f[0] != 'valu']
    if 'nov' in ABL:
        for g in fill: fill[g] = [f for f in fill[g] if not (f[0] == 'ds' and f[2][0] == 'v')]
    if 'nok' in ABL:
        for g in fill: fill[g] = [f for f in fill[g] if not (f[0] == 'ds' and f[2][0] == 'k')]

    def emit_fill(g):
        for kind, text, tag in fill[g]:
            if kind == "ds":
                k.ds(text, tag)
            else:
                k(text)

    emit_fill(-1)
    for idx, (text, tags) in enumerate(M):
        if idx == p0:
            slow = k.newlabel("slow")
            back = k.newlabel("back")
            k(f"v_add_f32 v{V_TS}, v{V_SA}, v{V_SB}")
            k(f"v_cmp_lt_f32 vcc, {THRESH}, v{V_TS}")
            k("s_nop 1")
            k(f"s_cbranch_vccnz {slow}")
            k.label(back)
            k(f"v_add_f32 v{V_L}, v{V_L}, v{V_TS}")
            slow_list.append((slow, back, cur, nxt))
        if tags:
            k.ds_wait(tags)
        k(text)
        emit_fill(idx)
    k("s_waitcnt vmcnt(8) lgkmcnt(0)")
    k.lds_q = []
    if 'nobar' not in ABL: k("s_barrier")


def gen_attn():
    k = Kern("attn")
    k("s_cmp_ge_u32 s2, 256")
    k("s_cbranch_scc1 L_attn_done")
    k("s_load_dwordx2 s[4:5], s[0:1], 8")
    k("s_load_dwordx2 s[6:7], s[0:1], 16")
    k("s_load_dwordx2 s[8:9], s[0:1], 24")
    k("s_load_dwordx2 s[10:11], s[0:1], 96")
    if 'stamp' in ABL:
        k("s_load_dwordx2 s[66:67], s[0:1], 88")
        k("s_memtime s[50:51]")
        k("s_memrealtime s[52:53]")
    k("s_and_b32 s14, s2, 7")
    k("s_lshr_b32 s15, s2, 3")
    k(f"s_lshr_b32 s{S_HEAD}, s15, 4")
    k(f"s_lshl_b32 s14, s14, 1")
    k(f"s_add_u32 s{S_HEAD}, s{S_HEAD}, s14")
    k(f"s_and_b32 s{S_QB}, s15, 15")
    k(f"v_and_b32 v{V_LANE}, 63, v0")
    k(f"v_and_b32 v{V_L31}, 31, v0")
    k(f"v_bfe_u32 v{V_H}, v0, 5, 1")
    k("v_lshrrev_b32 v4, 6, v0")
    k("s_nop 0")
    k(f"v_readfirstlane_b32 s3, v4")
    k("s_nop 3")
    k(f"s_lshl_b32 s{S_W4K}, s3, 12")
    for i in range(3):
        k(f"s_add_u32 s{S_M0K + i}, s{S_W4K}, {LDS_K + i * SLOT}")
        k(f"s_add_u32 s{S_M0V + i}, s{S_W4K}, {LDS_V + i * SLOT}")
    k("s_waitcnt lgkmcnt(0)")
    k(f"s_lshl_b32 s14, s{S_HEAD}, 20")
    make_srd(k, S_K, 4, 1 << 20, add_lo="s14")
    make_srd(k, S_V, 6, 1 << 20, add_lo="s14")
    make_srd(k, S_WQ, 8, 448 * 8192)
    make_srd(k, S_XN, 10, 2048 * 896, add_lo=WS_XNF)
    make_srd(k, S_O, 10, 2048 * 8192, add_lo=WS_OF)

    k(f"v_and_b32 v5, 15, v{V_L31}")
    k(f"v_lshlrev_b32 v6, 9, v{V_L31}")
    for tt in range(8):
        k(f"v_add_u32 v7, {2 * tt}, v{V_H}")
        k("v_xor_b32 v7, v7, v5")
        k(f"v_lshl_add_u32 v{V_KA + tt}, v7, 4, v6")
    k(f"v_bfe_u32 v5, v{V_LANE}, 2, 2")
    k(f"v_and_b32 v6, 3, v{V_LANE}")
    k(f"v_bfe_u32 v7, v{V_LANE}, 4, 1")
    k("v_lshlrev_b32 v46, 3, v6")
    k("v_lshl_add_u32 v46, v7, 5, v46")
    k(f"v_lshl_add_u32 v47, v{V_H}, 2, v5")
    k(f"v_lshl_add_u32 v45, v{V_H}, 3, v5")
    for d in range(4):
        k(f"v_xor_b32 v7, {d}, v5")
        k("v_lshl_add_u32 v7, v7, 6, v46")
        k(f"v_lshl_add_u32 v{V_VA + d}, v47, 9, v7")
        k(f"v_add_u32 v{V_VA + d}, {LDS_V}, v{V_VA + d}")
        k(f"v_lshl_add_u32 v{V_WA + d}, v45, 9, v7")
        k(f"v_add_u32 v{V_WA + d}, {LDS_V}, v{V_WA + d}")
    k("s_and_b32 s14, s3, 1")
    k("s_lshl_b32 s14, s14, 3")
    k(f"v_xor_b32 v5, s14, v{V_L31}")
    k(f"v_xor_b32 v5, v5, v{V_H}")
    k(f"v_lshlrev_b32 v6, 9, v{V_H}")
    k(f"v_add_u32 v6, s{S_W4K}, v6")
    for i in range(4):
        k(f"v_xor_b32 v7, {2 * i}, v5")
        k(f"v_lshl_add_u32 v{V_DK + i}, v7, 4, v6")
    for i in range(2):
        k(f"v_add_u32 v7, {2 * i}, v{V_H}")
        k("v_lshlrev_b32 v7, 2, v7")
        k(f"v_xor_b32 v7, v7, v{V_L31}")
        k(f"v_lshl_add_u32 v{V_DV + i}, v7, 4, v6")
    k("s_lshl_b32 s14, s3, 16")
    k(f"v_lshlrev_b32 v6, 13, v{V_H}")
    k("v_add_u32 v6, s14, v6")
    for i in range(4):
        k(f"v_add_u32 v7, {(2 * i) & 3}, v{V_H}")
        k("v_lshlrev_b32 v7, 2, v7")
        k(f"v_xor_b32 v7, v7, v{V_L31}")
        k(f"v_lshl_add_u32 v{V_DW + i}, v7, 4, v6")
        k(f"v_add_u32 v{V_DW + i}, {2 * i * 8192}, v{V_DW + i}")
    k(f"s_lshl_b32 s{S_WOFF}, s{S_HEAD}, 9")
    k(f"s_mov_b32 s{S_KOFF}, 0")
    k(f"s_mov_b32 s{S_VOFF}, 0")

    NWS = 7

    def wq_dma(ch):
        slot = ch % NWS
        for i in range(4):
            k(f"s_add_u32 m0, s{S_M0V}, {slot * SLOT + 1024 * i}")
            k("s_nop 0")
            k.vm(f"buffer_load_dwordx4 v{V_DW + i}, {sr(S_WQ, 4)}, s{S_WOFF} offen lds", ("w", ch))
        k(f"s_add_u32 s{S_WOFF}, s{S_WOFF}, {32 * 8192}")

    def k_dma(slot, tag):
        k(f"s_mov_b32 m0, s{S_M0K + slot}")
        k("s_nop 0")
        for i in range(4):
            k.vm(f"buffer_load_dwordx4 v{V_DK + i}, {sr(S_K, 4)}, s{S_KOFF} offen offset:{1024 * i} lds", tag)
        k(f"s_add_u32 s{S_KOFF}, s{S_KOFF}, {SLOT}")

    def v_dma(slot, tag):
        k(f"s_mov_b32 m0, s{S_M0V + slot}")
        k("s_nop 0")
        for i in range(4):
            k.vm(f"buffer_load_dwordx4 v{V_DV + (i & 1)}, {sr(S_V, 4)}, s{S_VOFF} offen offset:{1024 * i} lds", tag)
        k(f"s_add_u32 s{S_VOFF}, s{S_VOFF}, {SLOT}")

    wq_dma(0)
    k(f"s_lshl_b32 s14, s{S_QB}, 2")
    k("s_add_u32 s14, s14, s3")
    k("s_mul_i32 s15, s14, 28672")
    k(f"v_lshlrev_b32 v4, 4, v{V_LANE}")
    for t in range(28):
        k.vm(f"buffer_load_dwordx4 {vr(V_XN + 4 * t, 4)}, v4, {sr(S_XN, 4)}, s15 offen offset:{1024 * (t & 3)}", ("x", t))
        if t & 3 == 3:
            k("s_add_u32 s15, s15, 4096")
    for ch in range(1, NWS):
        wq_dma(ch)
    for s_ in range(3):
        k_dma(s_, ("K", s_))
    k(f"s_lshl_b32 s{S_OB}, s14, 18")
    k(f"s_lshl_b32 s14, s{S_HEAD}, 14")
    k(f"s_add_u32 s{S_OB}, s{S_OB}, s14")
    V_WA2 = 56
    for d in range(4):
        k(f"v_add_u32 v{V_WA2 + d}, 0x10000, v{V_WA + d}")

    FS = [A_KF, A_Q]

    def q_mfmas(ch):
        out = []
        for ks in range(2):
            for dt in range(8):
                i = ks * 8 + dt
                o = ar(A_O + 16 * dt, 16)
                c = "0" if (ch == 0 and ks == 0) else o
                out.append(mfma(o, ar(FS[ch & 1] + 4 * i, 4), vr(V_XN + 4 * (2 * ch + ks), 4), c))
        return out

    for ch in range(15):
        mf = q_mfmas(ch - 1) if ch >= 1 else []
        if ch >= 1:
            k.vm_wait([("x", 2 * ch - 2), ("x", 2 * ch - 1)])
        if ch == 14:
            k("s_waitcnt lgkmcnt(0)")
            for m in mf:
                k(m)
            break
        slot = ch % NWS
        k.vm_wait([("w", ch)])
        k("s_waitcnt lgkmcnt(0)")
        k("s_barrier")
        if ch >= 1 and ch + NWS - 1 < 14:
            wq_dma(ch + NWS - 1)
        for ks in range(2):
            for dt in range(8):
                i = ks * 8 + dt
                for u in range(2):
                    off = slot * SLOT + ks * 8192 + u * 2048 + (dt >> 2) * 256
                    wa = V_WA
                    if off >= 65536:
                        off -= 65536
                        wa = V_WA2
                    k(f"ds_read_b64_tr_b16 {ar(FS[ch & 1] + 4 * i + 2 * u, 2)}, v{wa + (dt & 3)} offset:{off}")
                if mf:
                    k(mf[i])
    k("s_barrier")
    v_dma(0, ("V", 0))
    v_dma(1, ("V", 1))
    k("s_nop 15")
    k("s_nop 3")
    T0 = V_S[0]
    PK = V_S[1]
    k(f"s_mov_b32 s14, {QSCALE}")
    for dt in range(8):
        for r in range(16):
            k(f"v_accvgpr_read_b32 v{T0 + r}, a{A_O + 16 * dt + r}")
        for r in range(16):
            k(f"v_mul_f32 v{T0 + r}, s14, v{T0 + r}")
        for i in range(8):
            k(f"v_cvt_pk_bf16_f32 v{PK + i}, v{T0 + 2 * i}, v{T0 + 2 * i + 1}")
        k("s_nop 1")
        for a, b in ((0, 2), (1, 3), (4, 6), (5, 7)):
            k(f"v_permlane32_swap_b32 v{PK + a}, v{PK + b}")
        k("s_nop 1")
        for i in range(8):
            k(f"v_accvgpr_write_b32 a{A_Q + 8 * dt + i}, v{PK + i}")
        for r in range(16):
            k(f"v_accvgpr_write_b32 a{A_O + 16 * dt + r}, 0")
    k.vm_wait([("K", 0), ("K", 1), ("V", 0)])
    k("s_barrier")
    for t in range(16):
        k.ds(k_read(t, 0), ("k", t))
    S0 = V_S[0]
    for t in range(16):
        k.ds_wait([("k", t)])
        c = "0" if t == 0 else vr(S0, 16)
        k(mfma(vr(S0, 16), ar(A_KF + 4 * t, 4), ar(A_Q + 4 * t, 4), c))
    k("s_nop 15")
    k("s_nop 3")
    k(f"v_max3_f32 v{V_MX}, v{S0}, v{S0 + 1}, v{S0 + 2}")
    for i in range(3, 15, 2):
        k(f"v_max3_f32 v{V_MX}, v{V_MX}, v{S0 + i}, v{S0 + i + 1}")
    k(f"v_max_f32 v{V_MX}, v{V_MX}, v{S0 + 15}")
    k(f"v_mov_b32 v{V_TMP}, v{V_MX}")
    k("s_nop 1")
    k(f"v_permlane32_swap_b32 v{V_TMP}, v{V_MX}")
    k("s_nop 1")
    k(f"v_max_f32 v{V_MX}, v{V_MX}, v{V_TMP}")
    for i in range(16):
        k(f"v_sub_f32 v{S0 + i}, v{S0 + i}, v{V_MX}")
        k(f"v_sub_f32 v{V_NEGM + i}, 0, v{V_MX}")
    k(f"v_mov_b32 v{V_L}, 0")
    k("s_barrier")
    k.vm_q = []

    slow_list = []
    gen_iter(k, 0, True, slow_list)
    k(f"s_mov_b32 s{S_CNT}, 21")
    if 'stamp' in ABL:
        k("s_memtime s[54:55]")
        k("s_memrealtime s[56:57]")
        k("s_waitcnt lgkmcnt(0)")
    k.label("L_attn_loop")
    for j3 in (1, 2, 0):
        gen_iter(k, j3, False, slow_list)
    k(f"s_sub_u32 s{S_CNT}, s{S_CNT}, 1")
    k(f"s_cmp_lg_u32 s{S_CNT}, 0")
    k("s_cbranch_scc1 L_attn_loop")
    if 'stamp' in ABL:
        k("s_memtime s[58:59]")
        k("s_memrealtime s[60:61]")
        k("s_waitcnt lgkmcnt(0)")
    for i in range(12, 16):
        k(pv_mfma(i))
    k(f"v_mov_b32 v{V_TMP}, v{V_L}")
    k("s_nop 1")
    k(f"v_permlane32_swap_b32 v{V_TMP}, v{V_L}")
    k("s_nop 1")
    k(f"v_add_f32 v{V_L}, v{V_L}, v{V_TMP}")
    k(f"v_rcp_f32 v{V_ALPHA}, v{V_L}")
    k("s_nop 15")
    k("s_nop 3")
    for dt in range(8):
        T0 = V_S[dt & 1]
        PK = V_VF + 8 * dt
        for r in range(16):
            k(f"v_accvgpr_read_b32 v{T0 + r}, a{A_O + 16 * dt + r}")
        for r in range(16):
            k(f"v_mul_f32 v{T0 + r}, v{V_ALPHA}, v{T0 + r}")
        for i in range(8):
            k(f"v_cvt_pk_bf16_f32 v{PK + i}, v{T0 + 2 * i}, v{T0 + 2 * i + 1}")
        k("s_nop 1")
        for a, b in ((0, 2), (1, 3), (4, 6), (5, 7)):
            k(f"v_permlane32_swap_b32 v{PK + a}, v{PK + b}")
        k("s_nop 1")
        k(f"buffer_store_dwordx4 {vr(PK, 4)}, v4, {sr(S_O, 4)}, s{S_OB} offen offset:{2048 * (dt & 1)}")
        k(f"buffer_store_dwordx4 {vr(PK + 4, 4)}, v4, {sr(S_O, 4)}, s{S_OB} offen offset:{2048 * (dt & 1) + 1024}")
        if dt & 1:
            k(f"s_add_u32 s{S_OB}, s{S_OB}, 4096")
    if 'stamp' in ABL:
        k("s_waitcnt vmcnt(0)")
        k("s_memtime s[62:63]")
        k("s_memrealtime s[64:65]")
        k("s_waitcnt lgkmcnt(0)")
        k("s_cmp_lg_u32 s2, 0")
        k("s_cbranch_scc1 L_attn_done")
        k("s_cmp_lg_u32 s3, 0")
        k("s_cbranch_scc1 L_attn_done")
        make_srd(k, 68, 66, 256)
        k("v_mov_b32 v5, 0")
        for i in range(8):
            k(f"v_mov_b32 v6, s{50 + 2 * i}")
            k(f"buffer_store_dword v6, v5, s[68:71], 0 offen offset:{4 * i}")
    k("s_endpgm")
    for slow, back, cur, nxt in slow_list:
        gen_slow(k, slow, back, cur, nxt)
    k.label("L_attn_done")
    k("s_endpgm")
    return k.text(), dict(vgpr=512, sgpr=80, accum=256)
```

```python
from asmlib import *
from layout import *
from k_ln import round_bf16
import os
ABL = os.environ.get('ABL', '').split(',')


def mfma(d, a, b, c):
    return f"v_mfma_f32_32x32x16_bf16 {d}, {a}, {b}, {c}"


S_X, S_W = 16, 20
S_WOFF, S_XOFF, S_BN, S_BM, S_CNT, S_WV = 36, 37, 38, 39, 40, 41
V_L31, V_H, V_ROW, V_L16 = 2, 3, 4, 9
T0, T1, T2, T3 = 5, 6, 7, 8


def ids(k, nblk_n, per_xcd_m):
    k("s_and_b32 s14, s2, 7")
    k("s_lshr_b32 s15, s2, 3")
    magic = (1 << 32) // nblk_n + 1
    k(f"s_mov_b32 s12, {magic}")
    k(f"s_mul_hi_u32 s{S_BM}, s15, s12")
    k(f"s_mul_i32 s12, s{S_BM}, {nblk_n}")
    k(f"s_sub_u32 s{S_BN}, s15, s12")
    k(f"s_mul_i32 s14, s14, {per_xcd_m}")
    k(f"s_add_u32 s{S_BM}, s{S_BM}, s14")
    k("v_and_b32 v1, 63, v0")
    k(f"v_and_b32 v{V_L31}, 31, v0")
    k(f"v_bfe_u32 v{V_H}, v0, 5, 1")
    k(f"v_lshlrev_b32 v{V_L16}, 4, v1")
    k(f"v_lshrrev_b32 v{T0}, 6, v0")
    k("s_nop 0")
    k(f"v_readfirstlane_b32 s3, v{T0}")
    k("s_nop 3")
    k(f"s_lshl_b32 s{S_WV}, s3, 10")


def w_read_addrs(k, RB, base, va, nset):
    k(f"v_bfe_u32 v{T0}, v1, 2, 2")
    k(f"v_and_b32 v{T1}, 3, v1")
    k(f"v_bfe_u32 v{T2}, v1, 4, 1")
    k(f"v_lshlrev_b32 v{T3}, 3, v{T1}")
    k(f"v_lshl_add_u32 v{T3}, v{T2}, 5, v{T3}")
    k(f"v_lshl_add_u32 v{T1}, v{V_H}, 3, v{T0}")
    k(f"v_mul_u32_u24 v{T1}, {RB}, v{T1}")
    k(f"v_add_u32 v{T3}, v{T3}, v{T1}")
    if base:
        k(f"v_add_u32 v{T3}, {base}, v{T3}")
    if RB == 128:
        k(f"v_lshrrev_b32 v{T0}, 1, v{T0}")
    for d in range(nset):
        k(f"v_xor_b32 v{T2}, {d}, v{T0}")
        k(f"v_lshl_add_u32 v{va + d}, v{T2}, 6, v{T3}")


def dma_src(k, B, stride, P, vbase, kind):
    LPR, RPP = B // 16, 1024 // B
    sh = {16: 4, 8: 3}[LPR]
    k(f"v_lshrrev_b32 v{T0}, {sh}, v1")
    k(f"v_and_b32 v{T1}, {LPR - 1}, v1")
    k(f"s_mul_i32 s14, s3, {RPP}")
    k(f"v_add_u32 v{T0}, s14, v{T0}")
    for i in range(P):
        k(f"v_add_u32 v{T2}, {i * 4 * RPP}, v{T0}")
        if kind == 'x':
            assert B == 128
            k(f"v_bfe_u32 v{T3}, v{T2}, 1, 3")
        elif B == 256:
            k(f"v_and_b32 v{T3}, 3, v{T2}")
            k(f"v_lshlrev_b32 v{T3}, 2, v{T3}")
        else:
            k(f"v_bfe_u32 v{T3}, v{T2}, 1, 1")
            k(f"v_lshlrev_b32 v{T3}, 2, v{T3}")
        k(f"v_xor_b32 v{T3}, v{T3}, v{T1}")
        k(f"s_mov_b32 s14, {stride}")
        k(f"v_mul_lo_u32 v{T2}, v{T2}, s14")
        k(f"v_lshl_add_u32 v{vbase + i}, v{T3}, 4, v{T2}")


def gelu_ops(k, x, t):
    k(f"v_mul_f32 v{t}, v{x}, v{x}")
    k(f"v_mov_b32 v{t + 1}, 1.0")
    k(f"v_fmac_f32 v{t + 1}, 0x3d372713, v{t}")
    k(f"v_mul_f32 v{t}, v{t + 1}, v{x}")
    k(f"v_mul_f32 v{t}, 0xc0135761, v{t}")
    k(f"v_exp_f32 v{t}, v{t}")
    k("s_nop 0")
    k(f"v_add_f32 v{t}, 1.0, v{t}")
    k(f"v_rcp_f32 v{t}, v{t}")
    k("s_nop 0")
    k(f"v_mul_f32 v{x}, v{x}, v{t}")


G1_LDS = 7 * 16384


def gen_g1():
    k = Kern("g1")
    V_WA, V_WA2, V_DW = 12, 16, 20
    V_XF, V_ACC, T = 32, 144, 208
    RB, CH = 256, 16384
    k("s_cmp_ge_u32 s2, 224")
    k("s_cbranch_scc1 L_g1_done")
    k("s_load_dwordx2 s[10:11], s[0:1], 96")
    k("s_load_dwordx2 s[6:7], s[0:1], 48")
    ids(k, 14, 2)
    w_read_addrs(k, RB, 0, V_WA, 4)
    for d in range(4):
        k(f"v_add_u32 v{V_WA2 + d}, 0x10000, v{V_WA + d}")
    dma_src(k, RB, 3584, 4, V_DW, 'w')
    k("s_waitcnt lgkmcnt(0)")
    make_srd(k, S_X, 10, 2048 * 896, add_lo=WS_XNF)
    make_srd(k, S_W, 6, 448 * 3584)
    k(f"s_lshl_b32 s{S_WOFF}, s{S_BN}, 8")
    k(f"s_lshl_b32 s14, s{S_BM}, 2")
    k("s_add_u32 s44, s14, s3")
    k("s_mul_i32 s15, s44, 28672")

    def wdma(c):
        for i in range(4):
            k(f"s_add_u32 m0, s{S_WV}, {c * CH + 4096 * i}")
            k("s_nop 0")
            k.vm(f"buffer_load_dwordx4 v{V_DW + i}, {sr(S_W, 4)}, s{S_WOFF} offen lds", ("w", c))
        k(f"s_add_u32 s{S_WOFF}, s{S_WOFF}, {64 * 3584}")

    for c in range(7):
        wdma(c)
        for t in range(4 * c, 4 * c + 4):
            k.vm(f"buffer_load_dwordx4 {vr(V_XF + 4 * t, 4)}, v{V_L16}, {sr(S_X, 4)}, s15 offen offset:{1024 * (t & 3)}", ("x", c))
        k("s_add_u32 s15, s15, 4096")

    def mf(c):
        out = []
        for ks in range(4):
            for nt in range(4):
                i = ks * 4 + nt
                o = vr(V_ACC + 16 * nt, 16)
                c_ = "0" if (c == 0 and ks == 0) else o
                out.append(mfma(o, ar(64 * (c & 1) + 4 * i, 4), vr(V_XF + 4 * (4 * c + ks), 4), c_))
        return out

    for c in range(8):
        m = mf(c - 1) if c >= 1 else []
        if c == 7:
            k("s_waitcnt lgkmcnt(0)")
            for x in m:
                k(x)
            break
        k.vm_wait([("w", c), ("x", c)])
        k("s_waitcnt lgkmcnt(0)")
        k("s_barrier")
        for ks in range(4):
            for nt in range(4):
                i = ks * 4 + nt
                for u in range(2):
                    off = c * CH + (16 * ks + 4 * u) * RB
                    wa = V_WA
                    if off >= 65536:
                        off -= 65536
                        wa = V_WA2
                    k(f"ds_read_b64_tr_b16 {ar(64 * (c & 1) + 4 * i + 2 * u, 2)}, v{wa + nt} offset:{off}")
                if m:
                    k(m[i])
    k("s_nop 15")
    k("s_nop 3")
    k(f"s_cmp_ge_u32 s{S_BN}, 7")
    k("s_cbranch_scc1 L_g1_z2")
    make_srd(k, 24, 10, 2048 * 1792, add_lo=WS_Z1A)
    k("s_mul_i32 s14, s44, 57344")
    k(f"s_lshl_b32 s15, s{S_BN}, 13")
    k("s_add_u32 s14, s14, s15")
    k(f"v_lshlrev_b32 v{T0}, 3, v1")
    for nt in range(4):
        for q in range(4):
            r0 = V_ACC + 16 * nt + 4 * q
            for j in range(4):
                round_bf16(k, r0 + j, r0 + j)
                gelu_ops(k, r0 + j, T)
            k(f"v_cvt_pk_bf16_f32 v{T + 4}, v{r0}, v{r0 + 1}")
            k(f"v_cvt_pk_bf16_f32 v{T + 5}, v{r0 + 2}, v{r0 + 3}")
            k(f"buffer_store_dwordx2 {vr(T + 4, 2)}, v{T0}, s[24:27], s14 offen offset:{2048 * (nt & 1) + 512 * q}")
            k("s_nop 1")
        if nt & 1:
            k("s_add_u32 s14, s14, 4096")
    k("s_endpgm")
    k.label("L_g1_z2")
    make_srd(k, 24, 10, 2048 * 1792, add_lo=WS_Z2)
    k(f"s_sub_u32 s15, s{S_BN}, 7")
    k("s_lshl_b32 s15, s15, 8")
    k("s_lshl_b32 s14, s44, 5")
    k(f"v_add_u32 v{V_ROW}, s14, v{V_L31}")
    k(f"v_mul_u32_u24 v{T0}, 1792, v{V_ROW}")
    k(f"v_add_u32 v{T0}, s15, v{T0}")
    k(f"v_lshl_add_u32 v{T0}, v{V_H}, 3, v{T0}")
    for nt in range(4):
        for q in range(4):
            r0 = V_ACC + 16 * nt + 4 * q
            for j in range(4):
                round_bf16(k, r0 + j, r0 + j)
                gelu_ops(k, r0 + j, T)
            k(f"v_cvt_pk_bf16_f32 v{T + 4}, v{r0}, v{r0 + 1}")
            k(f"v_cvt_pk_bf16_f32 v{T + 5}, v{r0 + 2}, v{r0 + 3}")
            k(f"buffer_store_dwordx2 {vr(T + 4, 2)}, v{T0}, s[24:27], 0 offen offset:{64 * nt + 16 * q}")
            k("s_nop 1")
    k.label("L_g1_done")
    k("s_endpgm")
    return k.text(), dict(vgpr=256 + 128, sgpr=64, accum=256)


G2_R = 6
G2_CH = 16384 + 8192
G2_LDS = G2_R * G2_CH


def gen_g2():
    k = Kern("g2")
    R, CH, XCH, RB, XB = G2_R, G2_CH, 16384, 128, 128
    V_WA, V_XA, V_DW, V_DX, V_TA = 12, 14, 18, 20, 24
    V_XF, V_WF, V_ACC, T = 32, 64, 128, 160
    P = 6
    k("s_cmp_ge_u32 s2, 224")
    k("s_cbranch_scc1 L_g2_done")
    k("s_load_dwordx2 s[10:11], s[0:1], 96")
    k("s_load_dwordx2 s[4:5], s[0:1], 56")
    k("s_load_dwordx2 s[8:9], s[0:1], 64")
    ids(k, 14, 2)
    w_read_addrs(k, RB, XCH, V_WA, 2)
    k("s_lshl_b32 s14, s3, 5")
    k(f"v_add_u32 v{T0}, s14, v{V_L31}")
    k(f"v_lshlrev_b32 v{T1}, 7, v{T0}")
    k(f"v_bfe_u32 v{T2}, v{T0}, 1, 3")
    for t in range(4):
        k(f"v_add_u32 v{T3}, {2 * t}, v{V_H}")
        k(f"v_xor_b32 v{T3}, v{T3}, v{T2}")
        k(f"v_lshl_add_u32 v{V_XA + t}, v{T3}, 4, v{T1}")
    dma_src(k, XB, 4096, 4, V_DX, 'x')
    dma_src(k, RB, 1792, 2, V_DW, 'w')
    k("s_waitcnt lgkmcnt(0)")
    make_srd(k, S_X, 4, 2048 * 4096)
    make_srd(k, S_W, 10, 2048 * 1792, add_lo=WS_Z2)
    k(f"s_lshl_b32 s{S_XOFF}, s{S_BM}, 19")
    k(f"s_lshl_b32 s{S_WOFF}, s{S_BN}, 7")

    def dma(slot):
        if 'gnodma' in ABL:
            return
        for i in range(4):
            k(f"s_add_u32 m0, s{S_WV}, {slot * CH + 4096 * i}")
            k("s_nop 0")
            k(f"buffer_load_dwordx4 v{V_DX + i}, {sr(S_X, 4)}, s{S_XOFF} offen lds")
        k(f"s_add_u32 s{S_XOFF}, s{S_XOFF}, 128")
        for i in range(2):
            k(f"s_add_u32 m0, s{S_WV}, {slot * CH + XCH + 4096 * i}")
            k("s_nop 0")
            k(f"buffer_load_dwordx4 v{V_DW + i}, {sr(S_W, 4)}, s{S_WOFF} offen lds")
        k(f"s_add_u32 s{S_WOFF}, s{S_WOFF}, {64 * 1792}")

    def mf(buf, first):
        out = []
        for ks in range(4):
            for nt in range(2):
                i = ks * 2 + nt
                o = vr(V_ACC + 16 * nt, 16)
                c_ = "0" if (first and ks == 0) else o
                out.append(mfma(o, vr(V_WF + 32 * buf + 4 * i, 4), vr(V_XF + 16 * buf + 4 * ks, 4), c_))
        return out

    def step(slot, buf, prev, wait):
        k(f"s_waitcnt vmcnt({wait}) lgkmcnt(0)")
        k("s_barrier")
        base = slot * CH
        xa, wa, boff = V_XA, V_WA, base
        if base + CH > 65536:
            boff = 0
            for t in range(4):
                k(f"v_add_u32 v{V_TA + t}, {base}, v{V_XA + t}")
            for t in range(2):
                k(f"v_add_u32 v{V_TA + 4 + t}, {base}, v{V_WA + t}")
            xa, wa = V_TA, V_TA + 4
        dma((slot + R - 1) % R)
        for ks in range(4):
            k(f"ds_read_b128 {vr(V_XF + 16 * buf + 4 * ks, 4)}, v{xa + ks} offset:{boff}")
            for nt in range(2):
                i = ks * 2 + nt
                for u in range(2):
                    off = boff + (16 * ks + 4 * u) * RB
                    k(f"ds_read_b64_tr_b16 {vr(V_WF + 32 * buf + 4 * i + 2 * u, 2)}, v{wa + nt} offset:{off}")
                if prev:
                    k(prev[i])

    for s in range(R - 1):
        dma(s)
    W0 = (R - 2) * P
    step(0, 0, None, W0)
    step(1, 1, mf(0, True), W0)
    k(f"s_mov_b32 s{S_CNT}, 5")
    k.label("L_g2_loop")
    for j in range(6):
        c = 2 + j
        step(c % R, c & 1, mf((c - 1) & 1, False), W0)
    k(f"s_sub_u32 s{S_CNT}, s{S_CNT}, 1")
    k(f"s_cmp_lg_u32 s{S_CNT}, 0")
    k("s_cbranch_scc1 L_g2_loop")
    k("s_waitcnt lgkmcnt(0)")
    for x in mf(1, False):
        k(x)
    make_srd(k, 24, 10, 2048 * 1792, add_lo=WS_Z1A)
    make_srd(k, 28, 10, 2048 * 1792, add_lo=WS_UF)
    make_srd(k, 32, 8, 4096)
    k(f"s_lshl_b32 s14, s{S_BM}, 2")
    k("s_add_u32 s44, s14, s3")
    k("s_lshl_b32 s14, s44, 5")
    k(f"v_add_u32 v{V_ROW}, s14, v{V_L31}")
    k(f"v_lshlrev_b32 v{T1}, 1, v{V_ROW}")
    k(f"buffer_load_ushort v{T2}, v{T1}, s[32:35], 0 offen")
    k("s_mul_i32 s14, s44, 57344")
    k(f"s_lshl_b32 s15, s{S_BN}, 12")
    k("s_add_u32 s14, s14, s15")
    k(f"v_lshlrev_b32 v{T0}, 3, v1")
    Z = V_WF
    for nt in range(2):
        for q in range(4):
            k(f"buffer_load_dwordx2 {vr(Z + 2 * (4 * nt + q), 2)}, v{T0}, s[24:27], s14 offen offset:{2048 * nt + 512 * q}")
    k("s_waitcnt vmcnt(0)")
    k(f"v_lshlrev_b32 v{T2}, 16, v{T2}")
    for nt in range(2):
        PK = V_XF + 8 * nt
        for q in range(4):
            r0 = V_ACC + 16 * nt + 4 * q
            z = Z + 2 * (4 * nt + q)
            for j in range(4):
                round_bf16(k, r0 + j, r0 + j)
                k(f"v_add_f32 v{r0 + j}, v{r0 + j}, v{T2}")
                round_bf16(k, r0 + j, r0 + j)
                if j & 1:
                    k(f"v_and_b32 v{T}, 0xffff0000, v{z + (j >> 1)}")
                else:
                    k(f"v_lshlrev_b32 v{T}, 16, v{z + (j >> 1)}")
                k(f"v_mul_f32 v{r0 + j}, v{r0 + j}, v{T}")
            k(f"v_cvt_pk_bf16_f32 v{PK + 2 * q}, v{r0}, v{r0 + 1}")
            k(f"v_cvt_pk_bf16_f32 v{PK + 2 * q + 1}, v{r0 + 2}, v{r0 + 3}")
        k("s_nop 1")
        for a, b in ((0, 2), (1, 3), (4, 6), (5, 7)):
            k(f"v_permlane32_swap_b32 v{PK + a}, v{PK + b}")
        k("s_nop 1")
        k(f"buffer_store_dwordx4 {vr(PK, 4)}, v{V_L16}, s[28:31], s14 offen offset:{2048 * nt}")
        k(f"buffer_store_dwordx4 {vr(PK + 4, 4)}, v{V_L16}, s[28:31], s14 offen offset:{2048 * nt + 1024}")
    k.label("L_g2_done")
    k("s_endpgm")
    return k.text(), dict(vgpr=176, sgpr=64, accum=176)


FIN_R = 8
FIN_LDS = FIN_R * 8192


def gen_fin():
    k = Kern("fin")
    R, CH, RB = FIN_R, 8192, 128
    V_WA, V_DW = 12, 14
    V_XF, V_WF, V_ACC, T = 16, 80, 112, 176
    P = 4
    k("s_cmp_ge_u32 s2, 224")
    k("s_cbranch_scc1 L_fin_done")
    k("s_load_dwordx2 s[10:11], s[0:1], 96")
    k("s_load_dwordx2 s[4:5], s[0:1], 32")
    k("s_load_dwordx2 s[6:7], s[0:1], 72")
    k("s_load_dwordx2 s[8:9], s[0:1], 0")
    k("s_load_dwordx2 s[50:51], s[0:1], 80")
    ids(k, 7, 4)
    k("s_and_b32 s46, s3, 1")
    k("s_lshr_b32 s47, s3, 1")
    k("s_lshl_b32 s14, s47, 12")
    w_read_addrs(k, RB, 0, V_WA, 2)
    for d in range(2):
        k(f"v_add_u32 v{V_WA + d}, s14, v{V_WA + d}")
    dma_src(k, RB, 896, 2, V_DW, 'w')
    k(f"s_lshl_b32 s14, s{S_BM}, 1")
    k("s_add_u32 s44, s14, s46")
    k("s_waitcnt lgkmcnt(0)")

    def phase(nch, ksteps_total, acc):
        k(f"s_mul_i32 s{S_XOFF}, s44, {ksteps_total * 1024}")
        k("s_lshl_b32 s14, s47, 11")
        k(f"s_add_u32 s{S_XOFF}, s{S_XOFF}, s14")
        k(f"s_lshl_b32 s{S_WOFF}, s{S_BN}, 7")

        def dma(slot):
            if 'gnodma' in ABL:
                return
            for i in range(2):
                k(f"buffer_load_dwordx4 {vr(V_XF + 8 * slot + 4 * i, 4)}, v{V_L16}, {sr(S_X, 4)}, s{S_XOFF} offen offset:{1024 * i}")
            k(f"s_add_u32 s{S_XOFF}, s{S_XOFF}, 4096")
            for i in range(2):
                k(f"s_add_u32 m0, s{S_WV}, {slot * CH + 4096 * i}")
                k("s_nop 0")
                k(f"buffer_load_dwordx4 v{V_DW + i}, {sr(S_W, 4)}, s{S_WOFF} offen lds")
            k(f"s_add_u32 s{S_WOFF}, s{S_WOFF}, {64 * 896}")

        def mf(slot, buf, first):
            out = []
            for ks in range(2):
                for nt in range(2):
                    i = ks * 2 + nt
                    o = vr(acc + 16 * nt, 16)
                    c_ = "0" if (first and ks == 0) else o
                    out.append(mfma(o, vr(V_WF + 16 * buf + 4 * i, 4), vr(V_XF + 8 * slot + 4 * ks, 4), c_))
            return out

        def step(slot, buf, prev, wait, pre):
            k(f"s_waitcnt vmcnt({wait}) lgkmcnt(0)")
            k("s_barrier")
            for ks in range(2):
                for nt in range(2):
                    i = ks * 2 + nt
                    for u in range(2):
                        off = slot * CH + (16 * ks + 4 * u) * RB
                        k(f"ds_read_b64_tr_b16 {vr(V_WF + 16 * buf + 4 * i + 2 * u, 2)}, v{V_WA + nt} offset:{off}")
                    if prev:
                        k(prev[i])
            if pre:
                dma((slot + R - 1) % R)

        for s in range(R - 1):
            dma(s)
        W0 = (R - 2) * P
        if nch <= 2 * R:
            for c in range(nch):
                later = min(c + R - 2, nch - 1) - c
                step(c % R, c & 1, mf((c - 1) % R, (c - 1) & 1, c == 1) if c else None, later * P, c + R - 1 < nch)
            last = nch - 1
        else:
            assert nch % R == 0 and R % 2 == 0
            for c in range(R):
                step(c, c & 1, mf((c - 1) % R, (c - 1) & 1, c == 1) if c else None, W0, True)
            k(f"s_mov_b32 s{S_CNT}, {nch // R - 1}")
            lp = k.newlabel("loop")
            k.label(lp)
            for c in range(R):
                step(c, c & 1, mf((c - 1) % R, (c - 1) & 1, False), W0, True)
            k(f"s_sub_u32 s{S_CNT}, s{S_CNT}, 1")
            k(f"s_cmp_lg_u32 s{S_CNT}, 0")
            k(f"s_cbranch_scc1 {lp}")
            last = R - 1
        k("s_waitcnt lgkmcnt(0)")
        for x in mf(last % R, last & 1, False):
            k(x)
        k("s_waitcnt vmcnt(0)")
        k("s_barrier")

    make_srd(k, S_X, 10, 2048 * 1792, add_lo=WS_UF)
    make_srd(k, S_W, 6, 896 * 896)
    phase(14, 56, V_ACC + 32)
    make_srd(k, S_X, 10, 2048 * 8192, add_lo=WS_OF)
    make_srd(k, S_W, 4, 4096 * 896)
    phase(64, 256, V_ACC)
    k("s_nop 15")
    k("s_lshl_b32 s14, s3, 13")
    k(f"v_add_u32 v{T0}, s14, v{V_L16}")
    k("s_xor_b32 s15, s3, 2")
    k("s_lshl_b32 s15, s15, 13")
    k(f"v_add_u32 v{T1}, s15, v{V_L16}")
    k("s_cmp_eq_u32 s47, 0")
    k("s_cbranch_scc1 L_fin_kh0")
    for ph in range(2):
        for q in range(4):
            k(f"ds_write_b128 v{T0}, {vr(V_ACC + 32 * ph + 4 * q, 4)} offset:{4096 * ph + 1024 * q}")
    for ph in range(2):
        for r in range(16):
            k(f"v_mov_b32 v{V_ACC + 32 * ph + r}, v{V_ACC + 32 * ph + 16 + r}")
    k("s_branch L_fin_join")
    k.label("L_fin_kh0")
    for ph in range(2):
        for q in range(4):
            k(f"ds_write_b128 v{T0}, {vr(V_ACC + 32 * ph + 16 + 4 * q, 4)} offset:{4096 * ph + 1024 * q}")
    k.label("L_fin_join")
    k("s_waitcnt lgkmcnt(0)")
    k("s_barrier")
    for ph in range(2):
        for q in range(4):
            k(f"ds_read_b128 {vr(V_ACC + 32 * ph + 16 + 4 * q, 4)}, v{T1} offset:{4096 * ph + 1024 * q}")
    make_srd(k, 24, 8, 2048 * 896)
    make_srd(k, 28, 50, 2048 * 896)
    k("s_lshl_b32 s14, s44, 5")
    k(f"v_add_u32 v{V_ROW}, s14, v{V_L31}")
    k("s_lshl_b32 s14, s47, 6")
    k(f"s_lshl_b32 s15, s{S_BN}, 7")
    k("s_add_u32 s14, s14, s15")
    k(f"v_mul_u32_u24 v{T0}, 896, v{V_ROW}")
    k(f"v_add_u32 v{T0}, s14, v{T0}")
    k(f"v_lshl_add_u32 v{T0}, v{V_H}, 3, v{T0}")
    XR = V_WF
    for q in range(4):
        k(f"buffer_load_dwordx2 {vr(XR + 2 * q, 2)}, v{T0}, s[24:27], 0 offen offset:{16 * q}")
    k("s_waitcnt vmcnt(0) lgkmcnt(0)")
    S, TT = V_ACC, V_ACC + 32
    for r in range(16):
        k(f"v_add_f32 v{S + r}, v{S + r}, v{S + 16 + r}")
        k(f"v_add_f32 v{TT + r}, v{TT + r}, v{TT + 16 + r}")
    for q in range(4):
        for j in range(4):
            r = 4 * q + j
            round_bf16(k, S + r, S + r)
            round_bf16(k, TT + r, TT + r)
            k(f"v_mul_f32 v{T}, 0xbfb8aa3b, v{TT + r}")
            k(f"v_exp_f32 v{T}, v{T}")
            k("s_nop 0")
            k(f"v_add_f32 v{T}, 1.0, v{T}")
            k(f"v_rcp_f32 v{T}, v{T}")
            k("s_nop 0")
            k(f"v_mul_f32 v{TT + r}, v{TT + r}, v{T}")
            round_bf16(k, TT + r, TT + r)
            k(f"v_mul_f32 v{S + r}, v{S + r}, v{TT + r}")
            round_bf16(k, S + r, S + r)
            if j & 1:
                k(f"v_and_b32 v{T}, 0xffff0000, v{XR + 2 * q + (j >> 1)}")
            else:
                k(f"v_lshlrev_b32 v{T}, 16, v{XR + 2 * q + (j >> 1)}")
            k(f"v_add_f32 v{S + r}, v{S + r}, v{T}")
        k(f"v_cvt_pk_bf16_f32 v{T + 2}, v{S + 4 * q}, v{S + 4 * q + 1}")
        k(f"v_cvt_pk_bf16_f32 v{T + 3}, v{S + 4 * q + 2}, v{S + 4 * q + 3}")
        k(f"buffer_store_dwordx2 {vr(T + 2, 2)}, v{T0}, s[28:31], 0 offen offset:{16 * q}")
        k("s_nop 1")
    k.label("L_fin_done")
    k("s_endpgm")
    return k.text(), dict(vgpr=184, sgpr=64, accum=184)
```

```python
from asmlib import *
from layout import *


def wave_allreduce_add(k, v, t):
    for m in (1, 2, 4, 8, 16):
        k(f"ds_swizzle_b32 v{t}, v{v} offset:{(m << 10) | 0x1F}")
        k("s_waitcnt lgkmcnt(0)")
        k(f"v_add_f32 v{v}, v{v}, v{t}")
    k(f"v_mov_b32 v{t}, v{v}")
    k("s_nop 1")
    k(f"v_permlane32_swap_b32 v{t}, v{v}")
    k("s_nop 1")
    k(f"v_add_f32 v{v}, v{v}, v{t}")


def round_bf16(k, dst, src):
    k(f"v_cvt_pk_bf16_f32 v{dst}, v{src}, v{src}")
    k(f"v_and_b32 v{dst}, 0xffff0000, v{dst}")


def gen_ln():
    k = Kern("ln")
    k("s_cmp_ge_u32 s2, 512")
    k("s_cbranch_scc1 L_ln_done")
    k("s_load_dwordx2 s[4:5], s[0:1], 0")
    k("s_load_dwordx2 s[6:7], s[0:1], 96")
    k("v_lshrrev_b32 v1, 6, v0")
    k("v_and_b32 v2, 63, v0")
    k("s_lshl_b32 s3, s2, 2")
    k("v_add_u32 v1, s3, v1")
    k("v_mul_u32_u24 v3, 896, v1")
    k("v_lshl_add_u32 v3, v2, 4, v3")
    k("v_cmp_gt_u32 vcc, 56, v2")
    k("v_mov_b32 v4, 0x7ffffff0")
    k("s_nop 1")
    k("v_cndmask_b32 v3, v4, v3, vcc")
    k("s_waitcnt lgkmcnt(0)")
    make_srd(k, 8, 4, 2048 * 896)
    make_srd(k, 12, 6, 2048 * 896, add_lo=WS_XNF)
    k("buffer_load_dwordx4 v[8:11], v3, s[8:11], 0 offen")
    k("v_lshrrev_b32 v28, 5, v1")
    k("v_mul_u32_u24 v28, 28672, v28")
    k("v_lshrrev_b32 v29, 1, v2")
    k("v_lshl_add_u32 v28, v29, 10, v28")
    k("v_and_b32 v29, 1, v2")
    k("v_lshl_add_u32 v28, v29, 9, v28")
    k("v_and_b32 v29, 31, v1")
    k("v_lshl_add_u32 v28, v29, 4, v28")
    k("v_cndmask_b32 v28, v4, v28, vcc")
    k("s_waitcnt vmcnt(0)")
    for i in range(4):
        k(f"v_lshlrev_b32 v{16 + 2 * i}, 16, v{8 + i}")
        k(f"v_and_b32 v{17 + 2 * i}, 0xffff0000, v{8 + i}")
    k("v_add_f32 v5, v16, v17")
    for i in range(2, 8):
        k(f"v_add_f32 v5, v5, v{16 + i}")
    wave_allreduce_add(k, 5, 6)
    k("v_mul_f32 v5, 0x3b124925, v5")
    k("v_mov_b32 v7, 0")
    for i in range(8):
        k(f"v_sub_f32 v24, v{16 + i}, v5")
        k("v_fmac_f32 v7, v24, v24")
    k("v_cndmask_b32 v7, 0, v7, vcc")
    wave_allreduce_add(k, 7, 6)
    k("v_mul_f32 v7, 0x3b124925, v7")
    round_bf16(k, 5, 5)
    round_bf16(k, 7, 7)
    k("v_add_f32 v7, 0x3727c5ac, v7")
    round_bf16(k, 7, 7)
    k("v_sqrt_f32 v7, v7")
    k("s_nop 0")
    round_bf16(k, 7, 7)
    k("v_rcp_f32 v7, v7")
    k("s_nop 0")
    for i in range(4):
        k(f"v_sub_f32 v24, v{16 + 2 * i}, v5")
        k(f"v_sub_f32 v25, v{17 + 2 * i}, v5")
        k("v_cvt_pk_bf16_f32 v26, v24, v25")
        k("v_lshlrev_b32 v24, 16, v26")
        k("v_and_b32 v25, 0xffff0000, v26")
        k("v_mul_f32 v24, v24, v7")
        k("v_mul_f32 v25, v25, v7")
        k(f"v_cvt_pk_bf16_f32 v{8 + i}, v24, v25")
    k("buffer_store_dwordx4 v[8:11], v28, s[12:15], 0 offen")
    k.label("L_ln_done")
    k("s_endpgm")
    return k.text(), dict(vgpr=32, sgpr=24, accum=32)


def gen_ln2():
    k = Kern("ln2")
    k("s_cmp_ge_u32 s2, 512")
    k("s_cbranch_scc1 L_ln2_done")
    k("s_load_dwordx2 s[6:7], s[0:1], 96")
    k("v_lshrrev_b32 v1, 6, v0")
    k("v_and_b32 v2, 63, v0")
    k("s_lshl_b32 s3, s2, 2")
    k("v_add_u32 v1, s3, v1")
    k("v_mul_u32_u24 v3, 1792, v1")
    k("v_lshl_add_u32 v3, v2, 4, v3")
    k("v_cmp_gt_u32 vcc, 56, v2")
    k("v_mov_b32 v4, 0x7ffffff0")
    k("s_nop 1")
    k("v_cndmask_b32 v3, v4, v3, vcc")
    k("s_waitcnt lgkmcnt(0)")
    make_srd(k, 12, 6, 2048 * 1792, add_lo=WS_Z2)
    k("buffer_load_dwordx4 v[8:11], v3, s[12:15], 0 offen")
    k("buffer_load_dwordx4 v[12:15], v3, s[12:15], 0 offen offset:896")
    k("s_waitcnt vmcnt(0)")
    for i in range(8):
        k(f"v_lshlrev_b32 v{16 + 2 * i}, 16, v{8 + i}")
        k(f"v_and_b32 v{17 + 2 * i}, 0xffff0000, v{8 + i}")
    k("v_add_f32 v5, v16, v17")
    for i in range(2, 16):
        k(f"v_add_f32 v5, v5, v{16 + i}")
    wave_allreduce_add(k, 5, 6)
    k("v_mul_f32 v5, 0x3a924925, v5")
    k("v_mov_b32 v7, 0")
    for i in range(16):
        k(f"v_sub_f32 v34, v{16 + i}, v5")
        k("v_fmac_f32 v7, v34, v34")
    k("v_cndmask_b32 v7, 0, v7, vcc")
    wave_allreduce_add(k, 7, 6)
    k("v_mul_f32 v7, 0x3a924925, v7")
    round_bf16(k, 5, 5)
    round_bf16(k, 7, 7)
    k("v_add_f32 v7, 0x3727c5ac, v7")
    round_bf16(k, 7, 7)
    k("v_sqrt_f32 v7, v7")
    k("s_nop 0")
    round_bf16(k, 7, 7)
    k("v_rcp_f32 v7, v7")
    k("s_nop 0")
    for i in range(8):
        k(f"v_sub_f32 v34, v{16 + 2 * i}, v5")
        k(f"v_sub_f32 v35, v{17 + 2 * i}, v5")
        k("v_cvt_pk_bf16_f32 v36, v34, v35")
        k("v_lshlrev_b32 v34, 16, v36")
        k("v_and_b32 v35, 0xffff0000, v36")
        k("v_mul_f32 v34, v34, v7")
        k("v_mul_f32 v35, v35, v7")
        k(f"v_cvt_pk_bf16_f32 v{8 + i}, v34, v35")
    k("buffer_store_dwordx4 v[8:11], v3, s[12:15], 0 offen")
    k("buffer_store_dwordx4 v[12:15], v3, s[12:15], 0 offen offset:896")
    k.label("L_ln2_done")
    k("s_endpgm")
    return k.text(), dict(vgpr=40, sgpr=24, accum=40)
```

```python
import sys, os
sys.path.insert(0, os.path.dirname(__file__))
from asmlib import *
import k_ln, k_attn, k_gemm3

HEADER = open(os.path.join(os.path.dirname(__file__), "..", "cdna_kernels",
    "recurrent_scan__mha_block_cached__mixer_gmlp__prompt.s.ref")).read().split("; Override launch")[0]

def build(kernels, out):
    s = HEADER
    for name, fn, grid, block, lds in kernels:
        s += f"; @launch kernel={name} grid=({grid},1,1) block=({block},1,1) lds={lds}\n"
    s += '.amdgcn_target "amdgcn-amd-amdhsa--gfx950"\n.text\n'
    descs = ""
    seen = set()
    for name, fn, grid, block, lds in kernels:
        if name in seen: continue
        seen.add(name)
        body, res = fn()
        s += kernel_header(name) + body
        descs += kernel_desc(name, res["vgpr"], res["sgpr"], res["accum"])
    s += '.section .rodata,"a"\n' + descs
    open(out, "w").write(s)

KERNELS = [
    ("ln_kernel", k_ln.gen_ln, 512, 256, 0),
    ("g1_kernel", k_gemm3.gen_g1, 224, 256, k_gemm3.G1_LDS),
    ("ln2_kernel", k_ln.gen_ln2, 512, 256, 0),
    ("g2_kernel", k_gemm3.gen_g2, 224, 256, k_gemm3.G2_LDS),
    ("attn_kernel", k_attn.gen_attn, 256, 256, 163840),
    ("fin_kernel", k_gemm3.gen_fin, 224, 256, k_gemm3.FIN_LDS),
]

if __name__ == "__main__":
    out = sys.argv[1] if len(sys.argv) > 1 else os.path.join(os.path.dirname(__file__), "..", "cdna_kernels",
        "recurrent_scan__mha_block_cached__mixer_gmlp__prompt.s")
    build(KERNELS, out)
    print("wrote", out)
```

```python
import sys, os
sys.path.insert(0, os.path.dirname(__file__))
from asmlib import *
import k_ln, k_attn, k_gemm3

HEADER = open(os.path.join(os.path.dirname(__file__), "..", "cdna_kernels",
    "recurrent_scan__mha_block_cached__mixer_gmlp__prompt.s.ref")).read().split("; Override launch")[0]

def add_span(body, idx):
    lines = body.split("\n")
    out = ["    s_memrealtime s[90:91]", "    s_load_dwordx2 s[92:93], s[0:1], 96", "    s_mov_b32 s100, s2"]
    n = 0
    for ln in lines:
        if ln.strip() == "s_endpgm":
            n += 1
            out += ["    s_waitcnt vmcnt(0) lgkmcnt(0)", "    s_memrealtime s[94:95]", "    s_waitcnt lgkmcnt(0)",
                    f"    s_add_u32 s96, s92, {0x8000000 + idx * 0x10000}", "    s_addc_u32 s97, s93, 0",
                    "    s_mov_b32 s98, 0x10000", "    s_mov_b32 s99, 0x00020000",
                    "    s_lshl_b32 s100, s100, 4", "    v_mov_b32 v0, s100", "    v_mov_b32 v2, s90", "    v_mov_b32 v3, s94",
                    "    buffer_store_dwordx2 v[2:3], v0, s[96:99], 0 offen"]
        out.append(ln)
    return "\n".join(out)


def add_span2(body, idx):
    lines = body.split("\n")
    out = ["    s_memrealtime s[90:91]", "    s_load_dwordx2 s[92:93], s[0:1], 88", "    s_mov_b32 s100, s2"]
    for ln in lines:
        if ln.strip() == "s_endpgm":
            out += ["    s_waitcnt vmcnt(0) lgkmcnt(0)", "    s_memrealtime s[94:95]", "    s_waitcnt lgkmcnt(0)",
                    f"    s_sub_u32 s96, s92, {512 * (idx - 1)}", "    s_subb_u32 s97, s93, 0",
                    "    s_mov_b32 s98, 256", "    s_mov_b32 s99, 0x00020000",
                    "    s_cmp_eq_u32 s100, 0", "    s_cselect_b32 s100, 0, 0x1000",
                    f"    s_add_u32 s100, s100, {8 * (idx - 1)}", "    v_mov_b32 v0, s100", "    v_mov_b32 v2, s90", "    v_mov_b32 v3, s94",
                    "    buffer_store_dwordx2 v[2:3], v0, s[96:99], 0 offen"]
        out.append(ln)
    return "\n".join(out)


def build(kernels, out):
    s = HEADER
    for name, fn, grid, block, lds in kernels:
        s += f"; @launch kernel={name} grid=({grid},1,1) block=({block},1,1) lds={lds}\n"
    s += '.amdgcn_target "amdgcn-amd-amdhsa--gfx950"\n.text\n'
    descs = ""
    seen = set()
    for name, fn, grid, block, lds in kernels:
        if name in seen: continue
        seen.add(name)
        body, res = fn()
        if os.environ.get("SPAN") == "2":
            body = add_span2(body, len(seen))
        elif os.environ.get("SPAN"):
            body = add_span(body, len(seen))
        s += kernel_header(name) + body
        descs += kernel_desc(name, res["vgpr"], 102 if os.environ.get("SPAN") else res["sgpr"], res["accum"])
    s += '.section .rodata,"a"\n' + descs
    open(out, "w").write(s)

def gen_front():
    k = Kern("front")
    k("s_cmp_ge_u32 s2, 480")
    k("s_cbranch_scc1 L_g1_done")
    k("s_cmp_lt_u32 s2, 224")
    k("s_cbranch_scc1 L_front_g1")
    k("s_sub_u32 s2, s2, 224")
    k_attn.gen_attn(k)
    k.label("L_front_g1")
    k_gemm3.gen_g1(k)
    return k.text(), dict(vgpr=512, sgpr=88, accum=256)


def gen_mega():
    k = Kern("mega")
    k("s_cmp_ge_u32 s2, 768")
    k("s_cbranch_scc1 L_g1_done")
    k("s_cmp_lt_u32 s2, 224")
    k("s_cbranch_scc1 L_mega_g1")
    k("s_cmp_ge_u32 s2, 544")
    k("s_cbranch_scc1 L_mega_g2")
    k("s_cmp_ge_u32 s2, 480")
    k("s_cbranch_scc1 L_mega_ln2")
    k("s_sub_u32 s2, s2, 224")
    k_attn.gen_attn(k)
    k.label("L_mega_ln2")
    k("s_sub_u32 s2, s2, 480")
    k_gemm3.gen_ln2_branch(k)
    k.label("L_mega_g2")
    k("s_sub_u32 s2, s2, 544")
    k_gemm3.gen_g2_4w(k)
    k.label("L_mega_g1")
    k_gemm3.gen_g1(k, sync=True)
    return k.text(), dict(vgpr=512, sgpr=88, accum=256)


KERNELS = [
    ("ln_kernel", k_ln.gen_ln, 512, 256, 0),
    ("mega_kernel", gen_mega, 768, 256, 163840),
    ("fin_kernel", k_gemm3.gen_fin, 224, 512, k_gemm3.FIN_LDS),
]

if os.environ.get("ONLYATTN"):
    KERNELS = [("ln_kernel", k_ln.gen_ln, 512, 256, 0), ("attn_kernel", k_attn.gen_attn, 256, 256, 163840)]

if __name__ == "__main__":
    out = sys.argv[1] if len(sys.argv) > 1 else os.path.join(os.path.dirname(__file__), "..", "cdna_kernels",
        "recurrent_scan__mha_block_cached__mixer_gmlp__prompt.s")
    build(KERNELS, out)
    print("wrote", out)
```

```python
from asmlib import *
from layout import *
from k_ln import reg_ln_stats, reg_ln_norm_ops
import os
ABL = os.environ.get('ABL', '').split(',')

S_K, S_V, S_WQ, S_XN, S_O = 16, 20, 24, 28, 32
S_KOFF, S_VOFF, S_CNT, S_WOFF, S_W4K = 36, 37, 38, 39, 40
S_M0K, S_M0V = 42, 45
S_HEAD, S_QB, S_OB, S_PF = 12, 13, 48, 49
V_PF = 45
V_LANE, V_L31, V_H = 1, 2, 3
V_KA, V_VA, V_WA, V_DK, V_DV, V_DW = 8, 16, 20, 24, 28, 30
V_L, V_TS, V_SA, V_SB, V_E, V_MX, V_TMP, V_ALPHA = 34, 35, 36, 37, 38, 42, 43, 44
V_P = 48
V_NEGM = 64
V_S = [80, 96, 112]
V_VF = 128
V_XN = 128
A_O, A_Q, A_KF = 0, 128, 192

LDS_K, LDS_V = 0, 49152
SLOT = 16384
QSCALE = 0x3db8aa3b
THRESH = 0x44800000


def mfma(d, a, b, c):
    return f"v_mfma_f32_32x32x16_bf16 {d}, {a}, {b}, {c}"


def softmax_ops(T):
    ops = []
    E = V_E

    def exps(i):
        e = E + 2 * (i & 1)
        return [f"v_exp_f32 v{e}, v{T + 2 * i}", f"v_exp_f32 v{e + 1}, v{T + 2 * i + 1}"]

    def post(i):
        e = E + 2 * (i & 1)
        if i == 0:
            o = [f"v_add_f32 v{V_SA}, v{e}, v{e + 1}"]
        elif i == 1:
            o = [f"v_add_f32 v{V_SB}, v{e}, v{e + 1}"]
        else:
            o = [f"v_add_f32 v{V_SA}, v{V_SA}, v{e}", f"v_add_f32 v{V_SB}, v{V_SB}, v{e + 1}"]
        o.append(f"v_cvt_pk_bf16_f32 v{V_P + i}, v{e}, v{e + 1}")
        return o

    ops += exps(0)
    for i in range(1, 8):
        ops += exps(i)
        ops += post(i - 1)
    ops += ["s_nop 0"] + post(7)
    return ops


def k_read(t, slot):
    off = LDS_K + slot * SLOT + (t >> 3) * 256
    return f"ds_read_b128 {ar(A_KF + 4 * t, 4)}, v{V_KA + (t & 7)} offset:{off}"


def v_read(i, u, slot):
    ks, dt = i // 8, i % 8
    off = slot * SLOT + ks * 8192 + u * 4096 + (dt >> 2) * 256
    return f"ds_read_b64_tr_b16 {vr(V_VF + 4 * i + 2 * u, 2)}, v{V_VA + (dt & 3)} offset:{off}"


def pv_mfma(i):
    ks, dt = i // 8, i % 8
    o = ar(A_O + 16 * dt, 16)
    return mfma(o, vr(V_VF + 4 * i, 4), vr(V_P + 4 * ks, 4), o)


def dma_ops(kslot, vslot):
    ops = [f"s_mov_b32 m0, s{S_M0K + kslot}", "s_nop 0"]
    for i in range(4):
        ops.append(f"buffer_load_dwordx4 v{V_DK + i}, {sr(S_K, 4)}, s{S_KOFF} offen offset:{1024 * i} lds")
    ops += [f"s_add_u32 s{S_KOFF}, s{S_KOFF}, {SLOT}", f"s_mov_b32 m0, s{S_M0V + vslot}", "s_nop 0"]
    for i in range(4):
        ops.append(f"buffer_load_dwordx4 v{V_DV + (i & 1)}, {sr(S_V, 4)}, s{S_VOFF} offen offset:{1024 * i} lds")
    ops.append(f"s_add_u32 s{S_VOFF}, s{S_VOFF}, {SLOT}")
    return ops


def gen_slow(k, lab, back, T, N):
    k.label(lab)
    k("s_nop 15")
    k("s_nop 7")
    k(f"v_max3_f32 v{V_MX}, v{T}, v{T + 1}, v{T + 2}")
    for i in range(3, 15, 2):
        k(f"v_max3_f32 v{V_MX}, v{V_MX}, v{T + i}, v{T + i + 1}")
    k(f"v_max_f32 v{V_MX}, v{V_MX}, v{T + 15}")
    k(f"v_mov_b32 v{V_TMP}, v{V_MX}")
    k("s_nop 1")
    k(f"v_permlane32_swap_b32 v{V_TMP}, v{V_MX}")
    k("s_nop 1")
    k(f"v_max_f32 v{V_MX}, v{V_MX}, v{V_TMP}")
    k(f"v_max_f32 v{V_MX}, 0, v{V_MX}")
    k(f"v_sub_f32 v{V_ALPHA}, 0, v{V_MX}")
    k(f"v_exp_f32 v{V_ALPHA}, v{V_ALPHA}")
    for i in range(16):
        k(f"v_sub_f32 v{T + i}, v{T + i}, v{V_MX}")
        k(f"v_sub_f32 v{N + i}, v{N + i}, v{V_MX}")
        k(f"v_sub_f32 v{V_NEGM + i}, v{V_NEGM + i}, v{V_MX}")
    k(f"v_mul_f32 v{V_L}, v{V_L}, v{V_ALPHA}")
    for i in range(128):
        t = V_E + (i & 3)
        k(f"v_accvgpr_read_b32 v{t}, a{A_O + i}")
        k(f"v_mul_f32 v{t}, v{t}, v{V_ALPHA}")
        k(f"v_accvgpr_write_b32 a{A_O + i}, v{t}")
    for o in softmax_ops(T):
        k(o)
    k(f"v_add_f32 v{V_TS}, v{V_SA}, v{V_SB}")
    k("s_nop 3")
    k(f"s_branch {back}")


def gen_iter(k, j3, first, slow_list, pos=None):
    cur, nxt = V_S[j3], V_S[(j3 + 1) % 3]
    kslot, vslot = (j3 + 1) % 3, j3
    M = []
    if not first:
        for i in range(12, 16):
            M.append((pv_mfma(i), []))
    for t in range(16):
        c = vr(V_NEGM, 16) if t == 0 else vr(nxt, 16)
        M.append((mfma(vr(nxt, 16), ar(A_KF + 4 * t, 4), ar(A_Q + 4 * t, 4), c), [("k", t)]))
    for i in range(12):
        M.append((pv_mfma(i), [("v", i, 0), ("v", i, 1)]))
    nm = len(M)
    q0 = 0 if first else 4
    p0 = q0 + 16
    fill = {g: [] for g in range(-1, nm)}
    for t in range(16):
        g = max(-1, q0 + t - int(os.environ.get('KLEAD', 6)))
        fill[g].append(("ds", k_read(t, kslot), ("k", t)))
    sm = softmax_ops(cur)
    for g, ops in spread(nm, sm, -1 if first else 0, p0 - 1).items():
        fill[g] += [("valu", o, None) for o in ops]
    vreads = [(i, u) for i in range(16) for u in range(2)]
    for g, items in spread(nm, vreads, p0 - int(os.environ.get('VLEAD', 7)), nm - 2).items():
        fill[g] += [("ds", v_read(i, u, vslot), ("v", i, u)) for (i, u) in items]
    dstart = {'p0': p0, 'all': 0, 'q0': q0}[os.environ.get('DSTART', 'p0')]
    for g, ops in spread(nm, dma_ops(j3, (j3 + 2) % 3), dstart, nm - 1).items():
        if 'nodma' in ABL: continue
        fill[g] += [("raw", o, None) for o in ops]
    if 'nosm' in ABL:
        for g in fill: fill[g] = [f for f in fill[g] if f[0] != 'valu']
    if 'nov' in ABL:
        for g in fill: fill[g] = [f for f in fill[g] if not (f[0] == 'ds' and f[2][0] == 'v')]
    if 'nok' in ABL:
        for g in fill: fill[g] = [f for f in fill[g] if not (f[0] == 'ds' and f[2][0] == 'k')]

    def emit_fill(g):
        for kind, text, tag in fill[g]:
            if kind == "ds":
                k.ds(text, tag)
            else:
                k(text)

    emit_fill(-1)
    for idx, (text, tags) in enumerate(M):
        if idx == p0:
            slow = k.newlabel("slow")
            back = k.newlabel("back")
            k(f"v_add_f32 v{V_TS}, v{V_SA}, v{V_SB}")
            k(f"v_cmp_lt_f32 vcc, {THRESH}, v{V_TS}")
            k("s_nop 1")
            k(f"s_cbranch_vccnz {slow}")
            k.label(back)
            k(f"v_add_f32 v{V_L}, v{V_L}, v{V_TS}")
            slow_list.append((slow, back, cur, nxt))
        if tags:
            k.ds_wait(tags)
        if 'm16' in ABL:
            import re
            m_ = re.match(r"v_mfma_f32_32x32x16_bf16 (\w)\[(\d+):\d+\], (\S+), (\S+), (\w)\[(\d+):\d+\]", text)
            dt_, d0, a_, b_, ct_, c0 = m_.group(1), int(m_.group(2)), m_.group(3), m_.group(4), m_.group(5), int(m_.group(6))
            fl = fill[idx]
            half = len(fl) // 2
            k(f"v_mfma_f32_16x16x32_bf16 {dt_}[{d0}:{d0+3}], {a_} {b_} {ct_}[{c0}:{c0+3}]".replace(", a[", ", a[") if False else
              f"v_mfma_f32_16x16x32_bf16 {dt_}[{d0}:{d0+3}], {a_.rstrip(',')}, {b_.rstrip(',')}, {ct_}[{c0}:{c0+3}]")
            fill[idx] = fl[:half]
            emit_fill(idx)
            k(f"v_mfma_f32_16x16x32_bf16 {dt_}[{d0+4}:{d0+7}], {a_.rstrip(',')}, {b_.rstrip(',')}, {ct_}[{c0+4}:{c0+7}]")
            fill[idx] = fl[half:]
            emit_fill(idx)
            continue
        k(text)
        emit_fill(idx)
    kv = 'kvpf' in ABL and pos is not None
    if kv and pos == 0:
        k(f"buffer_load_dword v7, v{V_PF}, {sr(S_K, 4)}, s{S_PF} offen")
        k(f"buffer_load_dword v7, v{V_PF}, {sr(S_V, 4)}, s{S_PF} offen")
        k(f"s_add_u32 s{S_PF}, s{S_PF}, {3 * SLOT}")
    k(f"s_waitcnt vmcnt({10 if kv and pos < 2 else 8}) lgkmcnt(0)")
    k.lds_q = []
    if 'nobar' not in ABL: k("s_barrier")


def gen_attn(k=None):
    own = k is None
    if own:
        k = Kern("attn")
        k("s_cmp_ge_u32 s2, 256")
        k("s_cbranch_scc1 L_attn_done")
    k.vm_q = []
    k.lds_q = []
    k("s_load_dwordx2 s[70:71], s[0:1], 0")
    k("s_load_dwordx2 s[4:5], s[0:1], 8")
    k("s_load_dwordx2 s[6:7], s[0:1], 16")
    k("s_load_dwordx2 s[8:9], s[0:1], 24")
    k("s_load_dwordx2 s[10:11], s[0:1], 96")
    if 'stamp' in ABL:
        k("s_load_dwordx2 s[66:67], s[0:1], 88")
        k("s_memtime s[50:51]")
        k("s_memrealtime s[52:53]")
    k("s_and_b32 s14, s2, 7")
    k("s_lshr_b32 s15, s2, 3")
    k(f"s_lshr_b32 s{S_HEAD}, s15, 4")
    k(f"s_lshl_b32 s14, s14, 1")
    k(f"s_add_u32 s{S_HEAD}, s{S_HEAD}, s14")
    k(f"s_and_b32 s{S_QB}, s15, 15")
    if 'badmap' in ABL:
        k(f"s_lshr_b32 s{S_HEAD}, s2, 4")
        k(f"s_and_b32 s{S_QB}, s2, 15")
    k(f"v_and_b32 v{V_LANE}, 63, v0")
    k(f"v_and_b32 v{V_L31}, 31, v0")
    k(f"v_bfe_u32 v{V_H}, v0, 5, 1")
    k("v_lshrrev_b32 v4, 6, v0")
    k("s_nop 0")
    k(f"v_readfirstlane_b32 s3, v4")
    k("s_nop 3")
    k(f"s_lshl_b32 s{S_W4K}, s3, 12")
    for i in range(3):
        k(f"s_add_u32 s{S_M0K + i}, s{S_W4K}, {LDS_K + i * SLOT}")
        k(f"s_add_u32 s{S_M0V + i}, s{S_W4K}, {LDS_V + i * SLOT}")
    k("s_waitcnt lgkmcnt(0)")
    k(f"s_lshl_b32 s14, s{S_HEAD}, 20")
    make_srd(k, S_K, 4, 1 << 20, add_lo="s14")
    make_srd(k, S_V, 6, 1 << 20, add_lo="s14")
    make_srd(k, S_WQ, 8, 448 * 8192)
    make_srd(k, S_XN, 10, 2048 * 896, add_lo=WS_XNF)
    make_srd(k, S_O, 10, 2048 * 8192, add_lo=WS_OF)

    k(f"v_and_b32 v5, 15, v{V_L31}")
    k(f"v_lshlrev_b32 v6, 9, v{V_L31}")
    for tt in range(8):
        k(f"v_add_u32 v7, {2 * tt}, v{V_H}")
        k("v_xor_b32 v7, v7, v5")
        k(f"v_lshl_add_u32 v{V_KA + tt}, v7, 4, v6")
    k(f"v_bfe_u32 v5, v{V_LANE}, 2, 2")
    k(f"v_and_b32 v6, 3, v{V_LANE}")
    k(f"v_bfe_u32 v7, v{V_LANE}, 4, 1")
    k("v_lshlrev_b32 v46, 3, v6")
    k("v_lshl_add_u32 v46, v7, 5, v46")
    k(f"v_lshl_add_u32 v47, v{V_H}, 2, v5")
    k(f"v_lshl_add_u32 v45, v{V_H}, 3, v5")
    for d in range(4):
        k(f"v_xor_b32 v7, {d}, v5")
        k("v_lshl_add_u32 v7, v7, 6, v46")
        k(f"v_lshl_add_u32 v{V_VA + d}, v47, 9, v7")
        k(f"v_add_u32 v{V_VA + d}, {LDS_V}, v{V_VA + d}")
        k(f"v_lshl_add_u32 v{V_WA + d}, v45, 9, v7")
        k(f"v_add_u32 v{V_WA + d}, {LDS_V}, v{V_WA + d}")
    k("s_and_b32 s14, s3, 1")
    k("s_lshl_b32 s14, s14, 3")
    k(f"v_xor_b32 v5, s14, v{V_L31}")
    k(f"v_xor_b32 v5, v5, v{V_H}")
    k(f"v_lshlrev_b32 v6, 9, v{V_H}")
    k(f"v_add_u32 v6, s{S_W4K}, v6")
    for i in range(4):
        k(f"v_xor_b32 v7, {2 * i}, v5")
        k(f"v_lshl_add_u32 v{V_DK + i}, v7, 4, v6")
    for i in range(2):
        k(f"v_add_u32 v7, {2 * i}, v{V_H}")
        k("v_lshlrev_b32 v7, 2, v7")
        k(f"v_xor_b32 v7, v7, v{V_L31}")
        k(f"v_lshl_add_u32 v{V_DV + i}, v7, 4, v6")
    k("s_lshl_b32 s14, s3, 16")
    k(f"v_lshlrev_b32 v6, 13, v{V_H}")
    k("v_add_u32 v6, s14, v6")
    for i in range(4):
        k(f"v_add_u32 v7, {(2 * i) & 3}, v{V_H}")
        k("v_lshlrev_b32 v7, 2, v7")
        k(f"v_xor_b32 v7, v7, v{V_L31}")
        k(f"v_lshl_add_u32 v{V_DW + i}, v7, 4, v6")
        k(f"v_add_u32 v{V_DW + i}, {2 * i * 8192}, v{V_DW + i}")
    k(f"s_lshl_b32 s{S_WOFF}, s{S_HEAD}, 9")
    k(f"s_mov_b32 s{S_KOFF}, 0")
    k(f"s_mov_b32 s{S_VOFF}, 0")

    NWS = 7

    def wq_dma(ch):
        slot = ch % NWS
        for i in range(4):
            k(f"s_add_u32 m0, s{S_M0V}, {slot * SLOT + 1024 * i}")
            k("s_nop 0")
            k.vm(f"buffer_load_dwordx4 v{V_DW + i}, {sr(S_WQ, 4)}, s{S_WOFF} offen lds", ("w", ch))
        k(f"s_add_u32 s{S_WOFF}, s{S_WOFF}, {32 * 8192}")

    def k_dma(slot, tag):
        k(f"s_mov_b32 m0, s{S_M0K + slot}")
        k("s_nop 0")
        for i in range(4):
            k.vm(f"buffer_load_dwordx4 v{V_DK + i}, {sr(S_K, 4)}, s{S_KOFF} offen offset:{1024 * i} lds", tag)
        k(f"s_add_u32 s{S_KOFF}, s{S_KOFF}, {SLOT}")

    def v_dma(slot, tag):
        k(f"s_mov_b32 m0, s{S_M0V + slot}")
        k("s_nop 0")
        for i in range(4):
            k.vm(f"buffer_load_dwordx4 v{V_DV + (i & 1)}, {sr(S_V, 4)}, s{S_VOFF} offen offset:{1024 * i} lds", tag)
        k(f"s_add_u32 s{S_VOFF}, s{S_VOFF}, {SLOT}")

    def wq_ops(ch):
        slot = ch % NWS
        ops = []
        for i in range(4):
            ops.append([f"s_add_u32 m0, s{S_M0V}, {slot * SLOT + 1024 * i}", "s_nop 0",
                        (f"buffer_load_dwordx4 v{V_DW + i}, {sr(S_WQ, 4)}, s{S_WOFF} offen lds", ("w", ch))])
        ops[-1].append(f"s_add_u32 s{S_WOFF}, s{S_WOFF}, {32 * 8192}")
        return ops

    def x_ops(t):
        o = [(f"buffer_load_dwordx4 {vr(V_XN + 4 * t, 4)}, v4, {sr(S_XN, 4)}, s15 offen offset:{1024 * (t & 3)}", ("x", t))]
        if t & 3 == 3:
            o.append("s_add_u32 s15, s15, 4096")
        return [o]

    def kv_ops(which, slot, tag):
        m0, dreg, srd, off = (S_M0K, V_DK, S_K, S_KOFF) if which == "K" else (S_M0V, V_DV, S_V, S_VOFF)
        ops = []
        for i in range(4):
            d = dreg + (i if which == "K" else (i & 1))
            ops.append([f"s_mov_b32 m0, s{m0 + slot}", "s_nop 0",
                        (f"buffer_load_dwordx4 v{d}, {sr(srd, 4)}, s{off} offen offset:{1024 * i} lds", tag)])
        ops[-1].append(f"s_add_u32 s{off}, s{off}, {SLOT}")
        return ops

    def emit_ops(group):
        for o in group:
            if isinstance(o, tuple):
                k.vm(o[0], o[1])
            else:
                k(o)

    k(f"s_lshl_b32 s14, s{S_QB}, 2")
    k("s_add_u32 s14, s14, s3")
    k("s_mul_i32 s15, s14, 28672")
    k(f"v_lshlrev_b32 v4, 4, v{V_LANE}")
    for ch in range(3):
        for g_ in wq_ops(ch) + x_ops(2 * ch) + x_ops(2 * ch + 1):
            emit_ops(g_)
    k(f"s_lshl_b32 s{S_OB}, s14, 18")
    k(f"s_lshl_b32 s14, s{S_HEAD}, 14")
    k(f"s_add_u32 s{S_OB}, s{S_OB}, s14")
    V_WA2 = 56
    for d in range(4):
        k(f"v_add_u32 v{V_WA2 + d}, 0x10000, v{V_WA + d}")
    kq = kv_ops("K", 0, ("K", 0)) + kv_ops("K", 1, ("K", 1)) + kv_ops("K", 2, ("K", 2))
    vq = kv_ops("V", 0, ("V", 0)) + kv_ops("V", 1, ("V", 1))

    FS = [A_KF, A_Q]

    def q_mfmas(ch):
        out = []
        for ks in range(2):
            for dt in range(8):
                i = ks * 8 + dt
                o = ar(A_O + 16 * dt, 16)
                c = "0" if (ch == 0 and ks == 0) else o
                out.append(mfma(o, ar(FS[ch & 1] + 4 * i, 4), vr(V_XN + 4 * (2 * ch + ks), 4), c))
        return out

    for ch in range(15):
        mf = q_mfmas(ch - 1) if ch >= 1 else []
        if ch >= 1:
            k.vm_wait([("x", 2 * ch - 2), ("x", 2 * ch - 1)])
        if ch == 14:
            k("s_waitcnt lgkmcnt(0)")
            for m in mf:
                k(m)
            break
        slot = ch % NWS
        k.vm_wait([("w", ch)])
        k("s_waitcnt lgkmcnt(0)")
        k("s_barrier")
        extra = []
        if ch + 3 < 14:
            extra += wq_ops(ch + 3) + x_ops(2 * ch + 6) + x_ops(2 * ch + 7)
        if ch >= 2:
            extra += kq[:2]
            kq = kq[2:]
        if ch >= 10:
            extra += vq[:2]
            vq = vq[2:]
        no = []
        for ks in range(2):
            for dt in range(8):
                i = ks * 8 + dt
                for u in range(2):
                    off = slot * SLOT + ks * 8192 + u * 2048 + (dt >> 2) * 256
                    wa = V_WA
                    if off >= 65536:
                        off -= 65536
                        wa = V_WA2
                    k(f"ds_read_b64_tr_b16 {ar(FS[ch & 1] + 4 * i + 2 * u, 2)}, v{wa + (dt & 3)} offset:{off}")
                if mf:
                    k(mf[i])
                for o in no[4 * i: 4 * i + 4]:
                    k(o)
                if i % 2 == 1 and extra:
                    emit_ops(extra.pop(0))
        for g_ in extra:
            emit_ops(g_)
    assert not kq and not vq
    k("s_nop 15")
    k("s_nop 3")
    T0 = V_S[0]
    PK = V_S[1]
    k(f"s_mov_b32 s14, {QSCALE}")
    for dt in range(8):
        for r in range(16):
            k(f"v_accvgpr_read_b32 v{T0 + r}, a{A_O + 16 * dt + r}")
        for r in range(16):
            k(f"v_mul_f32 v{T0 + r}, s14, v{T0 + r}")
        for i in range(8):
            k(f"v_cvt_pk_bf16_f32 v{PK + i}, v{T0 + 2 * i}, v{T0 + 2 * i + 1}")
        k("s_nop 1")
        for a, b in ((0, 2), (1, 3), (4, 6), (5, 7)):
            k(f"v_permlane32_swap_b32 v{PK + a}, v{PK + b}")
        k("s_nop 1")
        for i in range(8):
            k(f"v_accvgpr_write_b32 a{A_Q + 8 * dt + i}, v{PK + i}")
        for r in range(16):
            k(f"v_accvgpr_write_b32 a{A_O + 16 * dt + r}, 0")
    k.vm_wait([("K", 0), ("K", 1), ("V", 0)])
    k("s_barrier")
    for t in range(16):
        k.ds(k_read(t, 0), ("k", t))
    S0 = V_S[0]
    for t in range(16):
        k.ds_wait([("k", t)])
        c = "0" if t == 0 else vr(S0, 16)
        k(mfma(vr(S0, 16), ar(A_KF + 4 * t, 4), ar(A_Q + 4 * t, 4), c))
    k("s_nop 15")
    k("s_nop 3")
    k(f"v_max3_f32 v{V_MX}, v{S0}, v{S0 + 1}, v{S0 + 2}")
    for i in range(3, 15, 2):
        k(f"v_max3_f32 v{V_MX}, v{V_MX}, v{S0 + i}, v{S0 + i + 1}")
    k(f"v_max_f32 v{V_MX}, v{V_MX}, v{S0 + 15}")
    k(f"v_mov_b32 v{V_TMP}, v{V_MX}")
    k("s_nop 1")
    k(f"v_permlane32_swap_b32 v{V_TMP}, v{V_MX}")
    k("s_nop 1")
    k(f"v_max_f32 v{V_MX}, v{V_MX}, v{V_TMP}")
    for i in range(16):
        k(f"v_sub_f32 v{S0 + i}, v{S0 + i}, v{V_MX}")
        k(f"v_sub_f32 v{V_NEGM + i}, 0, v{V_MX}")
    k(f"v_mov_b32 v{V_L}, 0")
    k("s_barrier")
    k.vm_q = []

    if 'nopf' not in ABL:
        k("s_load_dwordx2 s[72:73], s[0:1], 56")
        k("s_load_dwordx2 s[74:75], s[0:1], 32")
        k("s_load_dwordx2 s[76:77], s[0:1], 48")
        k("s_load_dwordx2 s[78:79], s[0:1], 72")
        k("s_lshl_b32 s14, s2, 2")
        k("s_add_u32 s14, s14, s3")
        k("s_waitcnt lgkmcnt(0)")
        for j, (ptr, nbytes, per) in enumerate(((72, 2048 * 4096, 64), (74, 4096 * 896, 28), (76, 448 * 3584, 13), (78, 896 * 896, 7))):
            make_srd(k, 80, ptr, nbytes)
            k(f"s_mul_i32 s15, s14, {per * 128}")
            k(f"v_lshlrev_b32 v5, 7, v{V_LANE}")
            if per < 64:
                k(f"v_cmp_gt_u32 vcc, {per}, v{V_LANE}")
                k("v_mov_b32 v6, 0x7fffff00")
                k("s_nop 1")
                k("v_cndmask_b32 v5, v6, v5, vcc")
            k(f"buffer_load_dword v{8 + 0 * j - 8 + 7}, v5, s[80:83], s15 offen")
    if 'kvpf' in ABL:
        k(f"s_lshl_b32 s14, s{S_QB}, 2")
        k("s_add_u32 s14, s14, s3")
        k("v_mov_b32 v6, 0x7fffff00")
        k("s_mul_i32 s15, s14, 18")
        k(f"v_add_u32 v5, s15, v{V_LANE}")
        k("v_lshlrev_b32 v5, 7, v5")
        k(f"v_cmp_gt_u32 vcc, 18, v{V_LANE}")
        k("s_nop 1")
        k("v_cndmask_b32 v5, v6, v5, vcc")
        k(f"s_mov_b32 s15, {3 * SLOT}")
        k(f"buffer_load_dword v7, v5, {sr(S_K, 4)}, s15 offen")
        k(f"buffer_load_dword v7, v5, {sr(S_V, 4)}, s15 offen")
        k("s_mul_i32 s15, s14, 6")
        k(f"v_add_u32 v{V_PF}, s15, v{V_LANE}")
        k(f"v_lshlrev_b32 v{V_PF}, 7, v{V_PF}")
        k(f"v_cmp_gt_u32 vcc, 6, v{V_LANE}")
        k("s_nop 1")
        k(f"v_cndmask_b32 v{V_PF}, v6, v{V_PF}, vcc")
        k(f"s_mov_b32 s{S_PF}, {12 * SLOT}")
    slow_list = []
    gen_iter(k, 0, True, slow_list)
    k(f"s_mov_b32 s{S_CNT}, 21")
    if 'stamp' in ABL:
        k("s_memtime s[54:55]")
        k("s_memrealtime s[56:57]")
        k("s_waitcnt lgkmcnt(0)")
    k.label("L_attn_loop")
    for pos, j3 in enumerate((1, 2, 0)):
        gen_iter(k, j3, False, slow_list, pos)
    k(f"s_sub_u32 s{S_CNT}, s{S_CNT}, 1")
    k(f"s_cmp_lg_u32 s{S_CNT}, 0")
    k("s_cbranch_scc1 L_attn_loop")
    if 'stamp' in ABL:
        k("s_memtime s[58:59]")
        k("s_memrealtime s[60:61]")
        k("s_waitcnt lgkmcnt(0)")
    for i in range(12, 16):
        k(pv_mfma(i))
    k(f"v_mov_b32 v{V_TMP}, v{V_L}")
    k("s_nop 1")
    k(f"v_permlane32_swap_b32 v{V_TMP}, v{V_L}")
    k("s_nop 1")
    k(f"v_add_f32 v{V_L}, v{V_L}, v{V_TMP}")
    k(f"v_rcp_f32 v{V_ALPHA}, v{V_L}")
    k("s_nop 15")
    k("s_nop 3")
    for dt in range(8):
        T0 = V_S[dt & 1]
        PK = V_VF + 8 * dt
        for r in range(16):
            k(f"v_accvgpr_read_b32 v{T0 + r}, a{A_O + 16 * dt + r}")
        for r in range(16):
            k(f"v_mul_f32 v{T0 + r}, v{V_ALPHA}, v{T0 + r}")
        for i in range(8):
            k(f"v_cvt_pk_bf16_f32 v{PK + i}, v{T0 + 2 * i}, v{T0 + 2 * i + 1}")
        k("s_nop 1")
        for a, b in ((0, 2), (1, 3), (4, 6), (5, 7)):
            k(f"v_permlane32_swap_b32 v{PK + a}, v{PK + b}")
        k("s_nop 1")
        k(f"buffer_store_dwordx4 {vr(PK, 4)}, v4, {sr(S_O, 4)}, s{S_OB} offen offset:{2048 * (dt & 1)}")
        k(f"buffer_store_dwordx4 {vr(PK + 4, 4)}, v4, {sr(S_O, 4)}, s{S_OB} offen offset:{2048 * (dt & 1) + 1024}")
        if dt & 1:
            k(f"s_add_u32 s{S_OB}, s{S_OB}, 4096")
    if 'stamp' in ABL:
        k("s_waitcnt vmcnt(0)")
        k("s_memtime s[62:63]")
        k("s_memrealtime s[64:65]")
        k("s_waitcnt lgkmcnt(0)")
        k("s_cmp_lg_u32 s2, 0")
        k("s_cbranch_scc1 L_attn_done")
        k("s_cmp_lg_u32 s3, 0")
        k("s_cbranch_scc1 L_attn_done")
        make_srd(k, 68, 66, 256)
        k("v_mov_b32 v5, 0")
        for i in range(8):
            k(f"v_mov_b32 v6, s{50 + 2 * i}")
            k(f"buffer_store_dword v6, v5, s[68:71], 0 offen offset:{4 * i}")
    k("s_endpgm")
    for slow, back, cur, nxt in slow_list:
        gen_slow(k, slow, back, cur, nxt)
    k.label("L_attn_done")
    k("s_endpgm")
    return k.text(), dict(vgpr=512, sgpr=88, accum=256)
```

```python
from asmlib import *
from layout import *
from k_ln import round_bf16, reg_ln_stats, reg_ln_norm_ops
import os
ABL = os.environ.get('ABL', '').split(',')


def mfma(d, a, b, c):
    return f"v_mfma_f32_32x32x16_bf16 {d}, {a}, {b}, {c}"


S_X, S_W = 16, 20
S_WOFF, S_XOFF, S_BN, S_BM, S_CNT, S_WV = 36, 37, 38, 39, 40, 41
V_L31, V_H, V_ROW, V_L16 = 2, 3, 4, 9
T0, T1, T2, T3 = 5, 6, 7, 8


def ids(k, nblk_n, per_xcd_m):
    k("s_and_b32 s14, s2, 7")
    k("s_lshr_b32 s15, s2, 3")
    magic = (1 << 32) // nblk_n + 1
    k(f"s_mov_b32 s12, {magic}")
    k(f"s_mul_hi_u32 s{S_BM}, s15, s12")
    k(f"s_mul_i32 s12, s{S_BM}, {nblk_n}")
    k(f"s_sub_u32 s{S_BN}, s15, s12")
    k(f"s_mul_i32 s14, s14, {per_xcd_m}")
    k(f"s_add_u32 s{S_BM}, s{S_BM}, s14")
    if 'badmap2' in ABL:
        k(f"s_mov_b32 s12, {magic}")
        k(f"s_mul_hi_u32 s{S_BM}, s2, s12")
        k(f"s_mul_i32 s12, s{S_BM}, {nblk_n}")
        k(f"s_sub_u32 s{S_BN}, s2, s12")
    k("v_and_b32 v1, 63, v0")
    k(f"v_and_b32 v{V_L31}, 31, v0")
    k(f"v_bfe_u32 v{V_H}, v0, 5, 1")
    k(f"v_lshlrev_b32 v{V_L16}, 4, v1")
    k(f"v_lshrrev_b32 v{T0}, 6, v0")
    k("s_nop 0")
    k(f"v_readfirstlane_b32 s3, v{T0}")
    k("s_nop 3")
    k(f"s_lshl_b32 s{S_WV}, s3, 10")


def w_read_addrs(k, RB, base, va, nset):
    k(f"v_bfe_u32 v{T0}, v1, 2, 2")
    k(f"v_and_b32 v{T1}, 3, v1")
    k(f"v_bfe_u32 v{T2}, v1, 4, 1")
    k(f"v_lshlrev_b32 v{T3}, 3, v{T1}")
    k(f"v_lshl_add_u32 v{T3}, v{T2}, 5, v{T3}")
    k(f"v_lshl_add_u32 v{T1}, v{V_H}, 3, v{T0}")
    k(f"v_mul_u32_u24 v{T1}, {RB}, v{T1}")
    k(f"v_add_u32 v{T3}, v{T3}, v{T1}")
    if base:
        k(f"v_add_u32 v{T3}, {base}, v{T3}")
    if RB == 128:
        k(f"v_lshrrev_b32 v{T0}, 1, v{T0}")
    for d in range(nset):
        k(f"v_xor_b32 v{T2}, {d}, v{T0}")
        k(f"v_lshl_add_u32 v{va + d}, v{T2}, 6, v{T3}")


def dma_src(k, B, stride, P, vbase, kind, NW=4):
    LPR, RPP = B // 16, 1024 // B
    sh = {16: 4, 8: 3}[LPR]
    k(f"v_lshrrev_b32 v{T0}, {sh}, v1")
    k(f"v_and_b32 v{T1}, {LPR - 1}, v1")
    k(f"s_mul_i32 s14, s3, {RPP}")
    k(f"v_add_u32 v{T0}, s14, v{T0}")
    for i in range(P):
        k(f"v_add_u32 v{T2}, {i * NW * RPP}, v{T0}")
        if kind == 'x':
            assert B == 128
            k(f"v_bfe_u32 v{T3}, v{T2}, 1, 3")
        elif B == 256:
            k(f"v_and_b32 v{T3}, 3, v{T2}")
            k(f"v_lshlrev_b32 v{T3}, 2, v{T3}")
        else:
            k(f"v_bfe_u32 v{T3}, v{T2}, 1, 1")
            k(f"v_lshlrev_b32 v{T3}, 2, v{T3}")
        k(f"v_xor_b32 v{T3}, v{T3}, v{T1}")
        k(f"s_mov_b32 s14, {stride}")
        k(f"v_mul_lo_u32 v{T2}, v{T2}, s14")
        k(f"v_lshl_add_u32 v{vbase + i}, v{T3}, 4, v{T2}")


def gelu_ops(k, x, t):
    k(f"v_mul_f32 v{t}, v{x}, v{x}")
    k(f"v_mov_b32 v{t + 1}, 1.0")
    k(f"v_fmac_f32 v{t + 1}, 0x3d372713, v{t}")
    k(f"v_mul_f32 v{t}, v{t + 1}, v{x}")
    k(f"v_mul_f32 v{t}, 0xc0135761, v{t}")
    k(f"v_exp_f32 v{t}, v{t}")
    k("s_nop 0")
    k(f"v_add_f32 v{t}, 1.0, v{t}")
    k(f"v_rcp_f32 v{t}, v{t}")
    k("s_nop 0")
    k(f"v_mul_f32 v{x}, v{x}, v{t}")


G1_LDS = 7 * 16384


def ln_finish(k, s1, s2, inv_n, t):
    k(f"v_mul_f32 v{s1}, {inv_n}, v{s1}")
    k(f"v_mul_f32 v{s2}, {inv_n}, v{s2}")
    k(f"v_fma_f32 v{s2}, -v{s1}, v{s1}, v{s2}")
    k(f"v_max_f32 v{s2}, 0, v{s2}")
    round_bf16(k, s1, s1)
    round_bf16(k, s2, s2)
    k(f"v_add_f32 v{s2}, 0x3727c5ac, v{s2}")
    round_bf16(k, s2, s2)
    k(f"v_sqrt_f32 v{s2}, v{s2}")
    k("s_nop 0")
    round_bf16(k, s2, s2)
    k(f"v_rcp_f32 v{s2}, v{s2}")
    k("s_nop 0")


def half_add(k, v, t):
    k(f"v_mov_b32 v{t}, v{v}")
    k("s_nop 1")
    k(f"v_permlane32_swap_b32 v{t}, v{v}")
    k("s_nop 1")
    k(f"v_add_f32 v{v}, v{v}, v{t}")


def gen_g1_fused():
    k = Kern("g1")
    V_WA, V_WA2, V_DW = 12, 16, 20
    V_NM, V_RS = 24, 26
    V_XF, V_ACC, T = 32, 144, 208
    RB, CH = 256, 16384
    k("s_cmp_ge_u32 s2, 224")
    k("s_cbranch_scc1 L_g1_done")
    k("s_load_dwordx2 s[10:11], s[0:1], 96")
    k("s_load_dwordx2 s[6:7], s[0:1], 48")
    k("s_load_dwordx2 s[4:5], s[0:1], 0")
    k("s_load_dwordx2 s[8:9], s[0:1], 88")
    ids(k, 14, 2)
    w_read_addrs(k, RB, 0, V_WA, 4)
    for d in range(4):
        k(f"v_add_u32 v{V_WA2 + d}, 0x10000, v{V_WA + d}")
    dma_src(k, RB, 3584, 4, V_DW, 'w')
    k(f"s_lshl_b32 s14, s{S_BM}, 2")
    k("s_add_u32 s44, s14, s3")
    k("s_lshl_b32 s14, s44, 5")
    k(f"v_add_u32 v{V_ROW}, s14, v{V_L31}")
    k(f"v_mul_u32_u24 v{T0}, 896, v{V_ROW}")
    k(f"v_lshl_add_u32 v{T0}, v{V_H}, 4, v{T0}")
    k("s_waitcnt lgkmcnt(0)")
    make_srd(k, S_X, 4, 2048 * 896)
    make_srd(k, S_W, 6, 448 * 3584)
    k(f"s_lshl_b32 s{S_WOFF}, s{S_BN}, 8")

    def wdma(c):
        for i in range(4):
            k(f"s_add_u32 m0, s{S_WV}, {c * CH + 4096 * i}")
            k("s_nop 0")
            k.vm(f"buffer_load_dwordx4 v{V_DW + i}, {sr(S_W, 4)}, s{S_WOFF} offen lds", ("w", c))
        k(f"s_add_u32 s{S_WOFF}, s{S_WOFF}, {64 * 3584}")

    for t in range(28):
        k.vm(f"buffer_load_dwordx4 {vr(V_XF + 4 * t, 4)}, v{T0}, {sr(S_X, 4)}, 0 offen offset:{32 * t}", ("x", t))
    for c in range(7):
        wdma(c)
    k("s_mov_b32 s48, 0x3f803f80")
    A1, A2 = T, T + 4
    for i in range(4):
        k(f"v_mov_b32 v{A1 + i}, 0")
        k(f"v_mov_b32 v{A2 + i}, 0")
    for t in range(28):
        k.vm_wait([("x", t)])
        for i in range(4):
            r = V_XF + 4 * t + i
            k(f"v_dot2_f32_bf16 v{A1 + i}, v{r}, s48, v{A1 + i}")
            k(f"v_dot2_f32_bf16 v{A2 + i}, v{r}, v{r}, v{A2 + i}")
    for A in (A1, A2):
        k(f"v_add_f32 v{A}, v{A}, v{A + 1}")
        k(f"v_add_f32 v{A + 2}, v{A + 2}, v{A + 3}")
        k(f"v_add_f32 v{A}, v{A}, v{A + 2}")
        half_add(k, A, T + 8)
    ln_finish(k, A1, A2, "0x3b124925", T + 8)
    k(f"v_sub_f32 v{V_NM}, 0, v{A1}")
    k(f"v_mov_b32 v{V_RS}, v{A2}")

    def norm_ops(c):
        ops = []
        for i in range(16):
            r = V_XF + 16 * c + i
            t = T + 4 * (i & 1)
            ops += [f"v_lshlrev_b32 v{t}, 16, v{r}", f"v_and_b32 v{t + 1}, 0xffff0000, v{r}",
                    f"v_pk_add_f32 {vr(t, 2)}, {vr(t, 2)}, {vr(V_NM, 2)} op_sel_hi:[1,0]",
                    f"v_cvt_pk_bf16_f32 v{t + 2}, v{t}, v{t + 1}",
                    f"v_lshlrev_b32 v{t}, 16, v{t + 2}", f"v_and_b32 v{t + 1}, 0xffff0000, v{t + 2}",
                    f"v_pk_mul_f32 {vr(t, 2)}, {vr(t, 2)}, {vr(V_RS, 2)} op_sel_hi:[1,0]",
                    f"v_cvt_pk_bf16_f32 v{r}, v{t}, v{t + 1}"]
        return ops

    def mf(c):
        out = []
        for ks in range(4):
            for nt in range(4):
                i = ks * 4 + nt
                o = vr(V_ACC + 16 * nt, 16)
                c_ = "0" if (c == 0 and ks == 0) else o
                out.append(mfma(o, ar(64 * (c & 1) + 4 * i, 4), vr(V_XF + 4 * (4 * c + ks), 4), c_))
        return out

    for c in range(8):
        m = mf(c - 1) if c >= 1 else []
        if c == 7:
            k("s_waitcnt lgkmcnt(0)")
            k("s_nop 1")
            for x in m:
                k(x)
            break
        k.vm_wait([("w", c)])
        k("s_waitcnt lgkmcnt(0)")
        k("s_barrier")
        no = norm_ops(c)
        for ks in range(4):
            for nt in range(4):
                i = ks * 4 + nt
                for u in range(2):
                    off = c * CH + (16 * ks + 4 * u) * RB
                    wa = V_WA
                    if off >= 65536:
                        off -= 65536
                        wa = V_WA2
                    k(f"ds_read_b64_tr_b16 {ar(64 * (c & 1) + 4 * i + 2 * u, 2)}, v{wa + nt} offset:{off}")
                if m:
                    k(m[i])
                for o in no[8 * i: 8 * i + 8]:
                    k(o)
    k(f"s_cmp_lg_u32 s{S_BN}, 0")
    k("s_cbranch_scc1 L_g1_noxn")
    make_srd(k, 24, 10, 2048 * 896, add_lo=WS_XNF)
    k("s_mul_i32 s15, s44, 28672")
    for t in range(28):
        k(f"buffer_store_dwordx4 {vr(V_XF + 4 * t, 4)}, v{V_L16}, s[24:27], s15 offen offset:{1024 * (t & 3)}")
        if t & 3 == 3:
            k("s_add_u32 s15, s15, 4096")
    k.label("L_g1_noxn")
    k("s_nop 15")
    k("s_nop 3")
    for r in range(64):
        round_bf16(k, V_ACC + r, V_ACC + r)
        gelu_ops(k, V_ACC + r, T + 4 * (r & 1))
        round_bf16(k, V_ACC + r, V_ACC + r)
    k(f"s_cmp_ge_u32 s{S_BN}, 7")
    k("s_cbranch_scc1 L_g1_z2")
    make_srd(k, 24, 10, 2048 * 1792, add_lo=WS_Z1A)
    k("s_mul_i32 s14, s44, 57344")
    k(f"s_lshl_b32 s15, s{S_BN}, 13")
    k("s_add_u32 s14, s14, s15")
    k(f"v_lshlrev_b32 v{T0}, 3, v1")
    for nt in range(4):
        for q in range(4):
            r0 = V_ACC + 16 * nt + 4 * q
            p = V_XF + 2 * (4 * nt + q)
            k(f"v_cvt_pk_bf16_f32 v{p}, v{r0}, v{r0 + 1}")
            k(f"v_cvt_pk_bf16_f32 v{p + 1}, v{r0 + 2}, v{r0 + 3}")
            k(f"buffer_store_dwordx2 {vr(p, 2)}, v{T0}, s[24:27], s14 offen offset:{2048 * (nt & 1) + 512 * q}")
        if nt & 1:
            k("s_add_u32 s14, s14, 4096")
    k("s_endpgm")
    k.label("L_g1_z2")
    S1, S2 = T, T + 1
    k(f"v_mov_b32 v{S1}, 0")
    k(f"v_mov_b32 v{S2}, 0")
    k(f"v_mov_b32 v{T + 2}, 0")
    k(f"v_mov_b32 v{T + 3}, 0")
    for r in range(0, 64, 2):
        k(f"v_add_f32 v{S1}, v{S1}, v{V_ACC + r}")
        k(f"v_fmac_f32 v{S2}, v{V_ACC + r}, v{V_ACC + r}")
        k(f"v_add_f32 v{T + 2}, v{T + 2}, v{V_ACC + r + 1}")
        k(f"v_fmac_f32 v{T + 3}, v{V_ACC + r + 1}, v{V_ACC + r + 1}")
    k(f"v_add_f32 v{S1}, v{S1}, v{T + 2}")
    k(f"v_add_f32 v{S2}, v{S2}, v{T + 3}")
    half_add(k, S1, T + 8)
    half_add(k, S2, T + 8)
    make_srd(k, 28, 10, 2048 * 64, add_lo=WS_ST)
    make_srd(k, 32, 8, 256)
    k(f"s_sub_u32 s15, s{S_BN}, 7")
    k("s_lshl_b32 s14, s15, 3")
    k(f"v_lshlrev_b32 v{T1}, 6, v{V_ROW}")
    k(f"buffer_store_dwordx2 {vr(S1, 2)}, v{T1}, s[28:31], s14 offen sc1")
    k("s_waitcnt vmcnt(0)")
    k("s_barrier")
    k("s_cmp_lg_u32 s3, 0")
    k("s_cbranch_scc1 L_g1_wait")
    k(f"s_lshl_b32 s14, s{S_BM}, 2")
    k(f"v_mov_b32 v{T2}, s14")
    k(f"v_mov_b32 v{T3}, 1")
    k("s_mov_b64 s[52:53], exec")
    k("s_mov_b64 exec, 1")
    k(f"buffer_atomic_add v{T3}, v{T2}, s[32:35], 0 offen sc1")
    k("s_mov_b64 exec, s[52:53]")
    k("s_waitcnt vmcnt(0)")
    k("s_mov_b32 s49, 0x200000")
    k.label("L_g1_poll")
    k(f"buffer_load_dword v{T3}, v{T2}, s[32:35], 0 offen sc1")
    k("s_waitcnt vmcnt(0)")
    k(f"v_readfirstlane_b32 s14, v{T3}")
    k("s_sub_u32 s49, s49, 1")
    k("s_cmp_eq_u32 s49, 0")
    k("s_cbranch_scc1 L_g1_wait")
    k("s_cmp_ge_u32 s14, 7")
    k("s_cbranch_scc1 L_g1_wait")
    k("s_sleep 1")
    k("s_branch L_g1_poll")
    k.label("L_g1_wait")
    k("s_barrier")
    PS = V_XF
    for j in range(7):
        k(f"buffer_load_dwordx2 {vr(PS + 2 * j, 2)}, v{T1}, s[28:31], 0 offen offset:{8 * j} sc1")
    make_srd(k, 24, 10, 2048 * 1792, add_lo=WS_Z2)
    k("s_lshl_b32 s15, s15, 8")
    k(f"v_mul_u32_u24 v{T0}, 1792, v{V_ROW}")
    k(f"v_add_u32 v{T0}, s15, v{T0}")
    k(f"v_lshl_add_u32 v{T0}, v{V_H}, 3, v{T0}")
    k("s_waitcnt vmcnt(0)")
    k(f"v_add_f32 v{S1}, v{PS}, v{PS + 2}")
    k(f"v_add_f32 v{S2}, v{PS + 1}, v{PS + 3}")
    for j in range(2, 7):
        k(f"v_add_f32 v{S1}, v{S1}, v{PS + 2 * j}")
        k(f"v_add_f32 v{S2}, v{S2}, v{PS + 2 * j + 1}")
    ln_finish(k, S1, S2, "0x3a924925", T + 8)
    for nt in range(4):
        for q in range(4):
            r0 = V_ACC + 16 * nt + 4 * q
            p = V_XF + 16 + 2 * (4 * nt + q)
            for j in range(4):
                k(f"v_sub_f32 v{r0 + j}, v{r0 + j}, v{S1}")
                round_bf16(k, r0 + j, r0 + j)
                k(f"v_mul_f32 v{r0 + j}, v{r0 + j}, v{S2}")
            k(f"v_cvt_pk_bf16_f32 v{p}, v{r0}, v{r0 + 1}")
            k(f"v_cvt_pk_bf16_f32 v{p + 1}, v{r0 + 2}, v{r0 + 3}")
            k(f"buffer_store_dwordx2 {vr(p, 2)}, v{T0}, s[24:27], 0 offen offset:{64 * nt + 16 * q}")
    k.label("L_g1_done")
    k("s_endpgm")
    return k.text(), dict(vgpr=256 + 128, sgpr=64, accum=256)


def gen_g1(k=None, sync=False):
    own = k is None
    if own:
        k = Kern("g1")
    k.vm_q = []
    k.lds_q = []
    V_NM, V_RS = 24, 26
    V_WA, V_WA2, V_DW = 12, 16, 20
    V_XF, V_ACC, T = 32, 144, 208
    RB, CH = 256, 16384
    if own:
        k("s_cmp_ge_u32 s2, 224")
        k("s_cbranch_scc1 L_g1_done")
    k("s_load_dwordx2 s[10:11], s[0:1], 96")
    k("s_load_dwordx2 s[6:7], s[0:1], 48")
    k("s_load_dwordx2 s[8:9], s[0:1], 88")
    SC = " sc1" if sync else ""
    ids(k, 14, 2)
    w_read_addrs(k, RB, 0, V_WA, 4)
    for d in range(4):
        k(f"v_add_u32 v{V_WA2 + d}, 0x10000, v{V_WA + d}")
    dma_src(k, RB, 3584, 4, V_DW, 'w')
    k("s_waitcnt lgkmcnt(0)")
    make_srd(k, S_X, 10, 2048 * 896, add_lo=WS_XNF)
    make_srd(k, S_W, 6, 448 * 3584)
    k(f"s_lshl_b32 s{S_WOFF}, s{S_BN}, 8")
    k(f"s_lshl_b32 s14, s{S_BM}, 2")
    k("s_add_u32 s44, s14, s3")
    k("s_mul_i32 s15, s44, 28672")

    def wdma(c):
        for i in range(4):
            k(f"s_add_u32 m0, s{S_WV}, {c * CH + 4096 * i}")
            k("s_nop 0")
            k.vm(f"buffer_load_dwordx4 v{V_DW + i}, {sr(S_W, 4)}, s{S_WOFF} offen lds", ("w", c))
        k(f"s_add_u32 s{S_WOFF}, s{S_WOFF}, {64 * 3584}")

    for c in range(7):
        wdma(c)
        for t in range(4 * c, 4 * c + 4):
            k.vm(f"buffer_load_dwordx4 {vr(V_XF + 4 * t, 4)}, v{V_L16}, {sr(S_X, 4)}, s15 offen offset:{1024 * (t & 3)}", ("x", c))
        k("s_add_u32 s15, s15, 4096")

    def mf(c):
        out = []
        for ks in range(4):
            for nt in range(4):
                i = ks * 4 + nt
                o = vr(V_ACC + 16 * nt, 16)
                c_ = "0" if (c == 0 and ks == 0) else o
                out.append(mfma(o, ar(64 * (c & 1) + 4 * i, 4), vr(V_XF + 4 * (4 * c + ks), 4), c_))
        return out

    for c in range(8):
        m = mf(c - 1) if c >= 1 else []
        if c == 7:
            k("s_waitcnt lgkmcnt(0)")
            k("s_nop 1")
            for x in m:
                k(x)
            break
        k.vm_wait([("w", c), ("x", c)])
        k("s_waitcnt lgkmcnt(0)")
        k("s_barrier")
        no = []
        for ks in range(4):
            for nt in range(4):
                i = ks * 4 + nt
                for u in range(2):
                    off = c * CH + (16 * ks + 4 * u) * RB
                    wa = V_WA
                    if off >= 65536:
                        off -= 65536
                        wa = V_WA2
                    k(f"ds_read_b64_tr_b16 {ar(64 * (c & 1) + 4 * i + 2 * u, 2)}, v{wa + nt} offset:{off}")
                if m:
                    k(m[i])
                for o in no[8 * i: 8 * i + 8]:
                    k(o)
    k("s_nop 15")
    k("s_nop 3")
    for r in range(0, 64, 2):
        round_bf16(k, V_ACC + r, V_ACC + r)
        round_bf16(k, V_ACC + r + 1, V_ACC + r + 1)
        gelu2_ops(k, V_ACC + r, V_ACC + r + 1, T)
    k(f"s_cmp_ge_u32 s{S_BN}, 7")
    k("s_cbranch_scc1 L_g1_z2")
    make_srd(k, 24, 10, 2048 * 1792, add_lo=WS_Z1A)
    k("s_mul_i32 s14, s44, 57344")
    k(f"s_lshl_b32 s15, s{S_BN}, 13")
    k("s_add_u32 s14, s14, s15")
    k(f"v_lshlrev_b32 v{T0}, 3, v1")
    for nt in range(4):
        for q in range(4):
            r0 = V_ACC + 16 * nt + 4 * q
            p = V_XF + 2 * (4 * nt + q)
            k(f"v_cvt_pk_bf16_f32 v{p}, v{r0}, v{r0 + 1}")
            k(f"v_cvt_pk_bf16_f32 v{p + 1}, v{r0 + 2}, v{r0 + 3}")
            k(f"buffer_store_dwordx2 {vr(p, 2)}, v{T0}, s[24:27], s14 offen offset:{2048 * (nt & 1) + 512 * q}{SC}")
        if nt & 1:
            k("s_add_u32 s14, s14, 4096")
    if sync:
        signal(k, f"s{S_BM}", "g1a")
    k("s_endpgm")
    k.label("L_g1_z2")
    make_srd(k, 24, 10, 2048 * 1792, add_lo=WS_Z2)
    k(f"s_sub_u32 s15, s{S_BN}, 7")
    k("s_lshl_b32 s15, s15, 8")
    k("s_lshl_b32 s14, s44, 5")
    k(f"v_add_u32 v{V_ROW}, s14, v{V_L31}")
    k(f"v_mul_u32_u24 v{T0}, 1792, v{V_ROW}")
    k(f"v_add_u32 v{T0}, s15, v{T0}")
    k(f"v_lshl_add_u32 v{T0}, v{V_H}, 4, v{T0}")
    for nt in range(4):
        PK = V_XF + 8 * nt
        for i in range(8):
            k(f"v_cvt_pk_bf16_f32 v{PK + i}, v{V_ACC + 16 * nt + 2 * i}, v{V_ACC + 16 * nt + 2 * i + 1}")
        k("s_nop 1")
        for a, b in ((0, 2), (1, 3), (4, 6), (5, 7)):
            k(f"v_permlane32_swap_b32 v{PK + a}, v{PK + b}")
        k("s_nop 1")
        k(f"buffer_store_dwordx4 {vr(PK, 4)}, v{T0}, s[24:27], 0 offen offset:{64 * nt}{SC}")
        k(f"buffer_store_dwordx4 {vr(PK + 4, 4)}, v{T0}, s[24:27], 0 offen offset:{64 * nt + 32}{SC}")
    if sync:
        signal(k, f"s{S_BM}", "g1b")
    k.label("L_g1_done")
    k("s_endpgm")
    return k.text(), dict(vgpr=256 + 128, sgpr=64, accum=256)


def gelu2_ops(k, x, y, t):
    for (a, u) in ((x, t), (y, t + 2)):
        k(f"v_mul_f32 v{u}, v{a}, v{a}")
        k(f"v_mov_b32 v{u + 1}, 1.0")
    for (a, u) in ((x, t), (y, t + 2)):
        k(f"v_fmac_f32 v{u + 1}, 0x3d372713, v{u}")
    for (a, u) in ((x, t), (y, t + 2)):
        k(f"v_mul_f32 v{u}, v{u + 1}, v{a}")
    for (a, u) in ((x, t), (y, t + 2)):
        k(f"v_mul_f32 v{u}, 0xc0135761, v{u}")
    for (a, u) in ((x, t), (y, t + 2)):
        k(f"v_exp_f32 v{u}, v{u}")
    for (a, u) in ((x, t), (y, t + 2)):
        k(f"v_add_f32 v{u}, 1.0, v{u}")
    for (a, u) in ((x, t), (y, t + 2)):
        k(f"v_rcp_f32 v{u}, v{u}")
    for (a, u) in ((x, t), (y, t + 2)):
        k(f"v_mul_f32 v{a}, v{a}, v{u}")


G2_R = 6
G2_CH = 16384 + 8192
G2_LDS = G2_R * G2_CH


def gen_g2():
    k = Kern("g2")
    R, CH, XCH, RB, XB = G2_R, G2_CH, 16384, 128, 128
    V_WA, V_XA, V_DW, V_DX, V_TA = 12, 14, 16, 18, 20
    V_XF, V_WF, V_ACC, T = 32, 48, 80, 112
    P = 3
    k("s_cmp_ge_u32 s2, 224")
    k("s_cbranch_scc1 L_g2_done")
    k("s_load_dwordx2 s[10:11], s[0:1], 96")
    k("s_load_dwordx2 s[4:5], s[0:1], 56")
    k("s_load_dwordx2 s[8:9], s[0:1], 64")
    ids(k, 14, 2)
    k("s_and_b32 s46, s3, 3")
    k("s_lshr_b32 s47, s3, 2")
    w_read_addrs(k, RB, XCH, V_WA, 2)
    k("s_lshl_b32 s14, s47, 12")
    for d in range(2):
        k(f"v_add_u32 v{V_WA + d}, s14, v{V_WA + d}")
    k("s_lshl_b32 s14, s46, 5")
    k(f"v_add_u32 v{T0}, s14, v{V_L31}")
    k(f"v_lshlrev_b32 v{T1}, 7, v{T0}")
    k(f"v_bfe_u32 v{T2}, v{T0}, 1, 3")
    k("s_lshl_b32 s14, s47, 2")
    for t in range(2):
        k(f"v_add_u32 v{T3}, s14, v{V_H}")
        if t:
            k(f"v_add_u32 v{T3}, 2, v{T3}")
        k(f"v_xor_b32 v{T3}, v{T3}, v{T2}")
        k(f"v_lshl_add_u32 v{V_XA + t}, v{T3}, 4, v{T1}")
    dma_src(k, XB, 4096, 2, V_DX, 'x', 8)
    dma_src(k, RB, 1792, 1, V_DW, 'w', 8)
    k("s_waitcnt lgkmcnt(0)")
    make_srd(k, S_X, 4, 2048 * 4096)
    make_srd(k, S_W, 10, 2048 * 1792, add_lo=WS_Z2)
    k(f"s_lshl_b32 s{S_XOFF}, s{S_BM}, 19")
    k(f"s_lshl_b32 s{S_WOFF}, s{S_BN}, 7")

    def dma(slot):
        if 'gnodma' in ABL:
            return
        for i in range(2):
            k(f"s_add_u32 m0, s{S_WV}, {slot * CH + 8192 * i}")
            k("s_nop 0")
            k(f"buffer_load_dwordx4 v{V_DX + i}, {sr(S_X, 4)}, s{S_XOFF} offen lds")
        if 'fixx' not in ABL: k(f"s_add_u32 s{S_XOFF}, s{S_XOFF}, 128")
        k(f"s_add_u32 m0, s{S_WV}, {slot * CH + XCH}")
        k("s_nop 0")
        k(f"buffer_load_dwordx4 v{V_DW}, {sr(S_W, 4)}, s{S_WOFF} offen lds")
        if 'fixw' not in ABL: k(f"s_add_u32 s{S_WOFF}, s{S_WOFF}, {64 * 1792}")

    def mf(buf, first):
        out = []
        for ks in range(2):
            for nt in range(2):
                i = ks * 2 + nt
                o = vr(V_ACC + 16 * nt, 16)
                c_ = "0" if (first and ks == 0) else o
                out.append(mfma(o, vr(V_WF + 16 * buf + 4 * i, 4), vr(V_XF + 8 * buf + 4 * ks, 4), c_))
        return out

    def step(slot, buf, prev, wait):
        k(f"s_waitcnt vmcnt({wait}) lgkmcnt(0)")
        k("s_barrier")
        base = slot * CH
        xa, wa, boff = V_XA, V_WA, base
        if base + CH > 65536:
            boff = 0
            for t in range(2):
                k(f"v_add_u32 v{V_TA + t}, {base}, v{V_XA + t}")
            for t in range(2):
                k(f"v_add_u32 v{V_TA + 2 + t}, {base}, v{V_WA + t}")
            xa, wa = V_TA, V_TA + 2
        for ks in range(2):
            k(f"ds_read_b128 {vr(V_XF + 8 * buf + 4 * ks, 4)}, v{xa + ks} offset:{boff}")
            for nt in range(2):
                i = ks * 2 + nt
                for u in range(2):
                    off = boff + (16 * ks + 4 * u) * RB
                    k(f"ds_read_b64_tr_b16 {vr(V_WF + 16 * buf + 4 * i + 2 * u, 2)}, v{wa + nt} offset:{off}")
                if prev:
                    k(prev[i])
        dma((slot + R - 1) % R)

    for s_ in range(R - 1):
        dma(s_)
    W0 = (R - 2) * P
    step(0, 0, None, W0)
    step(1, 1, mf(0, True), W0)
    k(f"s_mov_b32 s{S_CNT}, 5")
    k.label("L_g2_loop")
    for j in range(6):
        c = 2 + j
        step(c % R, c & 1, mf((c - 1) & 1, False), W0)
    k(f"s_sub_u32 s{S_CNT}, s{S_CNT}, 1")
    k(f"s_cmp_lg_u32 s{S_CNT}, 0")
    k("s_cbranch_scc1 L_g2_loop")
    k("s_waitcnt lgkmcnt(0)")
    for x in mf(1, False):
        k(x)
    k("s_waitcnt vmcnt(0)")
    k("s_barrier")
    make_srd(k, 24, 10, 2048 * 1792, add_lo=WS_Z1A)
    make_srd(k, 28, 10, 2048 * 1792, add_lo=WS_UF)
    make_srd(k, 32, 8, 4096)
    k(f"s_lshl_b32 s14, s{S_BM}, 2")
    k("s_add_u32 s44, s14, s46")
    k("s_lshl_b32 s14, s44, 5")
    k(f"v_add_u32 v{V_ROW}, s14, v{V_L31}")
    k(f"v_lshlrev_b32 v{T1}, 1, v{V_ROW}")
    k(f"buffer_load_ushort v{T2}, v{T1}, s[32:35], 0 offen")
    k("s_mul_i32 s14, s44, 57344")
    k(f"s_lshl_b32 s15, s{S_BN}, 12")
    k("s_add_u32 s14, s14, s15")
    k("s_lshl_b32 s15, s47, 11")
    k("s_add_u32 s14, s14, s15")
    k(f"v_lshlrev_b32 v{T0}, 3, v1")
    Z = V_WF
    for q in range(4):
        k(f"buffer_load_dwordx2 {vr(Z + 2 * q, 2)}, v{T0}, s[24:27], s14 offen offset:{512 * q}")
    k("s_lshl_b32 s15, s3, 12")
    k(f"v_add_u32 v{T1}, s15, v{V_L16}")
    k("s_xor_b32 s15, s3, 4")
    k("s_lshl_b32 s15, s15, 12")
    k(f"v_add_u32 v{T3}, s15, v{V_L16}")
    k("s_nop 7")
    k("s_cmp_eq_u32 s47, 0")
    k("s_cbranch_scc1 L_g2_kh0")
    for q in range(4):
        k(f"ds_write_b128 v{T1}, {vr(V_ACC + 4 * q, 4)} offset:{1024 * q}")
    for r in range(16):
        k(f"v_mov_b32 v{V_ACC + r}, v{V_ACC + 16 + r}")
    k("s_branch L_g2_join")
    k.label("L_g2_kh0")
    for q in range(4):
        k(f"ds_write_b128 v{T1}, {vr(V_ACC + 16 + 4 * q, 4)} offset:{1024 * q}")
    k.label("L_g2_join")
    k("s_waitcnt lgkmcnt(0)")
    k("s_barrier")
    for q in range(4):
        k(f"ds_read_b128 {vr(V_ACC + 16 + 4 * q, 4)}, v{T3} offset:{1024 * q}")
    k("s_waitcnt vmcnt(0) lgkmcnt(0)")
    k(f"v_lshlrev_b32 v{T2}, 16, v{T2}")
    PK = V_XF
    for q in range(4):
        r0 = V_ACC + 4 * q
        z = Z + 2 * q
        for j in range(4):
            k(f"v_add_f32 v{r0 + j}, v{r0 + j}, v{r0 + 16 + j}")
            round_bf16(k, r0 + j, r0 + j)
            k(f"v_add_f32 v{r0 + j}, v{r0 + j}, v{T2}")
            round_bf16(k, r0 + j, r0 + j)
            if j & 1:
                k(f"v_and_b32 v{T}, 0xffff0000, v{z + (j >> 1)}")
            else:
                k(f"v_lshlrev_b32 v{T}, 16, v{z + (j >> 1)}")
            k(f"v_mul_f32 v{r0 + j}, v{r0 + j}, v{T}")
        k(f"v_cvt_pk_bf16_f32 v{PK + 2 * q}, v{r0}, v{r0 + 1}")
        k(f"v_cvt_pk_bf16_f32 v{PK + 2 * q + 1}, v{r0 + 2}, v{r0 + 3}")
    k("s_nop 1")
    for a, b in ((0, 2), (1, 3), (4, 6), (5, 7)):
        k(f"v_permlane32_swap_b32 v{PK + a}, v{PK + b}")
    k("s_nop 1")
    k(f"buffer_store_dwordx4 {vr(PK, 4)}, v{V_L16}, s[28:31], s14 offen")
    k(f"buffer_store_dwordx4 {vr(PK + 4, 4)}, v{V_L16}, s[28:31], s14 offen offset:1024")
    k.label("L_g2_done")
    k("s_endpgm")
    return k.text(), dict(vgpr=128, sgpr=64, accum=128)


FIN_R = 6
FIN_LDS = 131072


def gen_fin():
    k = Kern("fin")
    R, CH, RB = FIN_R, 16384, 128
    V_WA, V_DW, V_WB = 12, 14, 16
    V_XF, V_WF, V_ACC, T = 24, 72, 104, 168
    P = 4
    k("s_cmp_ge_u32 s2, 224")
    k("s_cbranch_scc1 L_fin_done")
    k("s_load_dwordx2 s[10:11], s[0:1], 96")
    k("s_load_dwordx2 s[4:5], s[0:1], 32")
    k("s_load_dwordx2 s[6:7], s[0:1], 72")
    k("s_load_dwordx2 s[8:9], s[0:1], 0")
    k("s_load_dwordx2 s[50:51], s[0:1], 80")
    ids(k, 7, 4)
    k("s_and_b32 s46, s3, 1")
    k("s_lshr_b32 s47, s3, 1")
    k("s_lshl_b32 s14, s47, 12")
    w_read_addrs(k, RB, 0, V_WA, 2)
    for d in range(2):
        k(f"v_add_u32 v{V_WA + d}, s14, v{V_WA + d}")
        k(f"v_add_u32 v{V_WB + d}, 0x10000, v{V_WA + d}")
    dma_src(k, RB, 896, 2, V_DW, 'w', 8)
    k(f"s_lshl_b32 s14, s{S_BM}, 1")
    k("s_add_u32 s44, s14, s46")
    k("s_waitcnt lgkmcnt(0)")

    S_X2, S_W2, S_XOFF2, S_WOFF2 = 24, 28, 52, 53
    make_srd(k, S_X, 10, 2048 * 1792, add_lo=WS_UF)
    make_srd(k, S_W, 6, 896 * 896)
    make_srd(k, S_X2, 10, 2048 * 8192, add_lo=WS_OF)
    make_srd(k, S_W2, 4, 4096 * 896)
    k("s_lshl_b32 s14, s47, 11")
    k(f"s_mul_i32 s{S_XOFF}, s44, {56 * 1024}")
    k(f"s_add_u32 s{S_XOFF}, s{S_XOFF}, s14")
    k(f"s_lshl_b32 s{S_XOFF2}, s44, 18")
    k(f"s_add_u32 s{S_XOFF2}, s{S_XOFF2}, s14")
    k(f"s_lshl_b32 s{S_WOFF}, s{S_BN}, 7")
    k(f"s_lshl_b32 s{S_WOFF2}, s{S_BN}, 7")
    NT_CH, NCH = 7, 39

    def dma(c):
        slot = c % R
        sx, sw, xo, wo = (S_X, S_W, S_XOFF, S_WOFF) if c < NT_CH else (S_X2, S_W2, S_XOFF2, S_WOFF2)
        for i in range(2):
            k(f"buffer_load_dwordx4 {vr(V_XF + 8 * slot + 4 * i, 4)}, v{V_L16}, {sr(sx, 4)}, s{xo} offen offset:{1024 * i}")
        k(f"s_add_u32 s{xo}, s{xo}, 8192")
        for i in range(2):
            k(f"s_add_u32 m0, s{S_WV}, {slot * CH + 8192 * i}")
            k("s_nop 0")
            k(f"buffer_load_dwordx4 v{V_DW + i}, {sr(sw, 4)}, s{wo} offen lds")
        k(f"s_add_u32 s{wo}, s{wo}, {128 * 896}")

    def mf(c):
        slot, buf = c % R, c & 1
        acc = V_ACC + 32 if c < NT_CH else V_ACC
        first = c in (0, NT_CH)
        out = []
        for ks in range(2):
            for nt in range(2):
                i = ks * 2 + nt
                o = vr(acc + 16 * nt, 16)
                c_ = "0" if (first and ks == 0) else o
                out.append(mfma(o, vr(V_WF + 16 * buf + 4 * i, 4), vr(V_XF + 8 * slot + 4 * ks, 4), c_))
        return out

    def step(c):
        slot, buf = c % R, c & 1
        prev = mf(c - 1) if c else None
        k(f"s_waitcnt vmcnt({(R - 2) * P}) lgkmcnt(0)")
        k("s_barrier")
        for ks in range(2):
            for nt in range(2):
                i = ks * 2 + nt
                for u in range(2):
                    off = slot * CH + (16 * ks + 4 * u) * RB
                    wa = V_WA
                    if off >= 65536:
                        off -= 65536
                        wa = V_WB
                    k(f"ds_read_b64_tr_b16 {vr(V_WF + 16 * buf + 4 * i + 2 * u, 2)}, v{wa + nt} offset:{off}")
                if prev:
                    k(prev[i])
        dma(c + R - 1)

    for c in range(R - 1):
        dma(c)
    for c in range(9):
        step(c)
    k(f"s_mov_b32 s{S_CNT}, 5")
    k.label("L_fin_loop")
    for c in range(9, 15):
        step(c)
    k(f"s_sub_u32 s{S_CNT}, s{S_CNT}, 1")
    k(f"s_cmp_lg_u32 s{S_CNT}, 0")
    k("s_cbranch_scc1 L_fin_loop")
    k("s_waitcnt lgkmcnt(0)")
    for x in mf(14):
        k(x)
    k("s_waitcnt vmcnt(0)")
    k("s_barrier")
    make_srd(k, 24, 8, 2048 * 896)
    make_srd(k, 28, 50, 2048 * 896)
    k("s_lshl_b32 s14, s44, 5")
    k(f"v_add_u32 v{V_ROW}, s14, v{V_L31}")
    k("s_and_b32 s14, s47, 1")
    k("s_lshl_b32 s14, s14, 6")
    k("s_lshr_b32 s15, s47, 1")
    k("s_lshl_b32 s15, s15, 5")
    k("s_add_u32 s14, s14, s15")
    k(f"s_lshl_b32 s15, s{S_BN}, 7")
    k("s_add_u32 s14, s14, s15")
    k(f"v_mul_u32_u24 v{T0}, 896, v{V_ROW}")
    k(f"v_add_u32 v{T0}, s14, v{T0}")
    k(f"v_lshl_add_u32 v{T0}, v{V_H}, 3, v{T0}")
    XR = V_WF
    for q in range(2):
        k(f"buffer_load_dwordx2 {vr(XR + 2 * q, 2)}, v{T0}, s[24:27], 0 offen offset:{16 * q}")
    k("s_lshl_b32 s14, s3, 14")
    k(f"v_add_u32 v{T1}, s14, v{V_L16}")
    for ph in range(2):
        for nt in range(2):
            for q in range(4):
                k(f"ds_write_b128 v{T1}, {vr(V_ACC + 32 * ph + 16 * nt + 4 * q, 4)} offset:{8192 * ph + 4096 * nt + 1024 * q}")
    k("s_lshl_b32 s14, s46, 14")
    k("s_and_b32 s15, s47, 1")
    k("s_lshl_b32 s15, s15, 12")
    k("s_add_u32 s14, s14, s15")
    k("s_lshr_b32 s15, s47, 1")
    k("s_lshl_b32 s15, s15, 11")
    k("s_add_u32 s14, s14, s15")
    k(f"v_add_u32 v{T1}, s14, v{V_L16}")
    k(f"v_add_u32 v{T2}, 0x10000, v{T1}")
    k("s_waitcnt lgkmcnt(0)")
    k("s_barrier")
    for ph in range(2):
        for j in range(4):
            for q in range(2):
                k(f"ds_read_b128 {vr(V_ACC + 32 * ph + 8 * j + 4 * q, 4)}, v{T1 if j < 2 else T2} offset:{32768 * (j & 1) + 8192 * ph + 1024 * q}")
    k("s_waitcnt vmcnt(0) lgkmcnt(0)")
    S, TT = V_ACC, V_ACC + 32
    for b in (S, TT):
        for r in range(8):
            k(f"v_add_f32 v{b + r}, v{b + r}, v{b + 8 + r}")
            k(f"v_add_f32 v{b + 16 + r}, v{b + 16 + r}, v{b + 24 + r}")
            k(f"v_add_f32 v{b + r}, v{b + r}, v{b + 16 + r}")
    for q in range(2):
        for j in range(4):
            r = 4 * q + j
            round_bf16(k, S + r, S + r)
            round_bf16(k, TT + r, TT + r)
            k(f"v_mul_f32 v{T}, 0xbfb8aa3b, v{TT + r}")
            k(f"v_exp_f32 v{T}, v{T}")
            k("s_nop 0")
            k(f"v_add_f32 v{T}, 1.0, v{T}")
            k(f"v_rcp_f32 v{T}, v{T}")
            k("s_nop 0")
            k(f"v_mul_f32 v{TT + r}, v{TT + r}, v{T}")
            round_bf16(k, TT + r, TT + r)
            k(f"v_mul_f32 v{S + r}, v{S + r}, v{TT + r}")
            round_bf16(k, S + r, S + r)
            if j & 1:
                k(f"v_and_b32 v{T}, 0xffff0000, v{XR + 2 * q + (j >> 1)}")
            else:
                k(f"v_lshlrev_b32 v{T}, 16, v{XR + 2 * q + (j >> 1)}")
            k(f"v_add_f32 v{S + r}, v{S + r}, v{T}")
        k(f"v_cvt_pk_bf16_f32 v{T + 2}, v{S + 4 * q}, v{S + 4 * q + 1}")
        k(f"v_cvt_pk_bf16_f32 v{T + 3}, v{S + 4 * q + 2}, v{S + 4 * q + 3}")
        k(f"buffer_store_dwordx2 {vr(T + 2, 2)}, v{T0}, s[28:31], 0 offen offset:{16 * q}")
        k("s_nop 1")
    k.label("L_fin_done")
    k("s_endpgm")
    return k.text(), dict(vgpr=176, sgpr=64, accum=176)


def signal(k, ctr_dword_sgpr_or_imm, tag):
    k("s_waitcnt vmcnt(0)")
    k("s_barrier")
    k("s_cmp_lg_u32 s3, 0")
    k(f"s_cbranch_scc1 L_sig_{tag}")
    make_srd(k, 56, 8, 256)
    if isinstance(ctr_dword_sgpr_or_imm, int):
        k(f"v_mov_b32 v{T2}, {4 * ctr_dword_sgpr_or_imm}")
    else:
        k(f"s_lshl_b32 s14, {ctr_dword_sgpr_or_imm}, 2")
        k(f"v_mov_b32 v{T2}, s14")
    k(f"v_mov_b32 v{T3}, 1")
    k("s_mov_b64 exec, 1")
    k(f"buffer_atomic_add v{T3}, v{T2}, s[56:59], 0 offen sc1")
    k("s_mov_b64 exec, -1")
    k.label(f"L_sig_{tag}")


def wait_for(k, ctr_dword_sgpr_or_imm, count, tag, acquire):
    k("s_cmp_lg_u32 s3, 0")
    k(f"s_cbranch_scc1 L_wdone_{tag}")
    make_srd(k, 56, 8, 256)
    if isinstance(ctr_dword_sgpr_or_imm, int):
        k(f"v_mov_b32 v{T2}, {4 * ctr_dword_sgpr_or_imm}")
    else:
        k(f"s_lshl_b32 s14, {ctr_dword_sgpr_or_imm}, 2")
        k(f"v_mov_b32 v{T2}, s14")
    k("s_mov_b32 s49, 0x400000")
    k.label(f"L_wpoll_{tag}")
    k(f"buffer_load_dword v{T3}, v{T2}, s[56:59], 0 offen sc1")
    k("s_waitcnt vmcnt(0)")
    k(f"v_readfirstlane_b32 s14, v{T3}")
    k("s_sub_u32 s49, s49, 1")
    k("s_cmp_eq_u32 s49, 0")
    k(f"s_cbranch_scc1 L_wacq_{tag}")
    k(f"s_cmp_ge_u32 s14, {count}")
    k(f"s_cbranch_scc1 L_wacq_{tag}")
    k("s_sleep 2")
    k(f"s_branch L_wpoll_{tag}")
    k.label(f"L_wacq_{tag}")
    if acquire:
        k("buffer_inv sc1")
        k("s_waitcnt vmcnt(0)")
    k.label(f"L_wdone_{tag}")
    k("s_barrier")
    if acquire:
        pass


def gen_g2_4w(k):
    R, CH, XCH, RB, XB = G2_R, G2_CH, 16384, 128, 128
    V_WA, V_XA, V_DW, V_DX, V_TA = 12, 14, 18, 20, 24
    V_XF, V_WF, V_ACC, T = 32, 64, 128, 160
    P = 6
    k.vm_q = []
    k.lds_q = []
    k("s_load_dwordx2 s[10:11], s[0:1], 96")
    k("s_load_dwordx2 s[4:5], s[0:1], 56")
    k("s_load_dwordx2 s[6:7], s[0:1], 64")
    k("s_load_dwordx2 s[8:9], s[0:1], 88")
    ids(k, 14, 2)
    w_read_addrs(k, RB, XCH, V_WA, 2)
    k("s_lshl_b32 s14, s3, 5")
    k(f"v_add_u32 v{T0}, s14, v{V_L31}")
    k(f"v_lshlrev_b32 v{T1}, 7, v{T0}")
    k(f"v_bfe_u32 v{T2}, v{T0}, 1, 3")
    for t in range(4):
        k(f"v_add_u32 v{T3}, {2 * t}, v{V_H}")
        k(f"v_xor_b32 v{T3}, v{T3}, v{T2}")
        k(f"v_lshl_add_u32 v{V_XA + t}, v{T3}, 4, v{T1}")
    dma_src(k, XB, 4096, 4, V_DX, 'x')
    dma_src(k, RB, 1792, 2, V_DW, 'w')
    k("s_waitcnt lgkmcnt(0)")
    make_srd(k, S_X, 4, 2048 * 4096)
    make_srd(k, S_W, 10, 2048 * 1792, add_lo=WS_Z2N)
    k(f"s_lshl_b32 s{S_XOFF}, s{S_BM}, 19")
    k(f"s_lshl_b32 s{S_WOFF}, s{S_BN}, 7")
    wait_for(k, 16, 64, "g2", True)

    def dma(slot):
        for i in range(4):
            k(f"s_add_u32 m0, s{S_WV}, {slot * CH + 4096 * i}")
            k("s_nop 0")
            k(f"buffer_load_dwordx4 v{V_DX + i}, {sr(S_X, 4)}, s{S_XOFF} offen lds")
        k(f"s_add_u32 s{S_XOFF}, s{S_XOFF}, 128")
        for i in range(2):
            k(f"s_add_u32 m0, s{S_WV}, {slot * CH + XCH + 4096 * i}")
            k("s_nop 0")
            k(f"buffer_load_dwordx4 v{V_DW + i}, {sr(S_W, 4)}, s{S_WOFF} offen lds")
        k(f"s_add_u32 s{S_WOFF}, s{S_WOFF}, {64 * 1792}")

    def mf(buf, first):
        out = []
        for ks in range(4):
            for nt in range(2):
                i = ks * 2 + nt
                o = vr(V_ACC + 16 * nt, 16)
                c_ = "0" if (first and ks == 0) else o
                out.append(mfma(o, vr(V_WF + 32 * buf + 4 * i, 4), vr(V_XF + 16 * buf + 4 * ks, 4), c_))
        return out

    def step(slot, buf, prev, wait):
        k(f"s_waitcnt vmcnt({wait}) lgkmcnt(0)")
        k("s_barrier")
        base = slot * CH
        xa, wa, boff = V_XA, V_WA, base
        if base + CH > 65536:
            boff = 0
            for t in range(4):
                k(f"v_add_u32 v{V_TA + t}, {base}, v{V_XA + t}")
            for t in range(2):
                k(f"v_add_u32 v{V_TA + 4 + t}, {base}, v{V_WA + t}")
            xa, wa = V_TA, V_TA + 4
        d = []
        sl2 = (slot + R - 1) % R
        for i in range(4):
            d.append([f"s_add_u32 m0, s{S_WV}, {sl2 * CH + 4096 * i}", "s_nop 0",
                      f"buffer_load_dwordx4 v{V_DX + i}, {sr(S_X, 4)}, s{S_XOFF} offen lds"])
        d[-1].append(f"s_add_u32 s{S_XOFF}, s{S_XOFF}, 128")
        for i in range(2):
            d.append([f"s_add_u32 m0, s{S_WV}, {sl2 * CH + XCH + 4096 * i}", "s_nop 0",
                      f"buffer_load_dwordx4 v{V_DW + i}, {sr(S_W, 4)}, s{S_WOFF} offen lds"])
        d[-1].append(f"s_add_u32 s{S_WOFF}, s{S_WOFF}, {64 * 1792}")
        for ks in range(4):
            k(f"ds_read_b128 {vr(V_XF + 16 * buf + 4 * ks, 4)}, v{xa + ks} offset:{boff}")
            for nt in range(2):
                i = ks * 2 + nt
                for u in range(2):
                    off = boff + (16 * ks + 4 * u) * RB
                    k(f"ds_read_b64_tr_b16 {vr(V_WF + 32 * buf + 4 * i + 2 * u, 2)}, v{wa + nt} offset:{off}")
                if prev:
                    k(prev[i])
                if d and i >= 1:
                    for o in d.pop(0):
                        k(o)
        for g_ in d:
            for o in g_:
                k(o)

    for s_ in range(R - 1):
        dma(s_)
    W0 = (R - 2) * P
    step(0, 0, None, W0)
    step(1, 1, mf(0, True), W0)
    k(f"s_mov_b32 s{S_CNT}, 5")
    k.label("L_g2_loop")
    for j in range(6):
        c = 2 + j
        step(c % R, c & 1, mf((c - 1) & 1, False), W0)
    k(f"s_sub_u32 s{S_CNT}, s{S_CNT}, 1")
    k(f"s_cmp_lg_u32 s{S_CNT}, 0")
    k("s_cbranch_scc1 L_g2_loop")
    k("s_waitcnt lgkmcnt(0)")
    for x in mf(1, False):
        k(x)
    make_srd(k, 24, 10, 2048 * 1792, add_lo=WS_Z1A)
    make_srd(k, 28, 10, 2048 * 1792, add_lo=WS_UF)
    make_srd(k, 32, 6, 4096)
    k(f"s_lshl_b32 s14, s{S_BM}, 2")
    k("s_add_u32 s44, s14, s3")
    k("s_lshl_b32 s14, s44, 5")
    k(f"v_add_u32 v{V_ROW}, s14, v{V_L31}")
    k(f"v_lshlrev_b32 v{T1}, 1, v{V_ROW}")
    k(f"buffer_load_ushort v{T2}, v{T1}, s[32:35], 0 offen")
    k("s_mul_i32 s14, s44, 57344")
    k(f"s_lshl_b32 s15, s{S_BN}, 12")
    k("s_add_u32 s14, s14, s15")
    k(f"v_lshlrev_b32 v{T0}, 3, v1")
    Z = V_WF
    for nt in range(2):
        for q in range(4):
            k(f"buffer_load_dwordx2 {vr(Z + 2 * (4 * nt + q), 2)}, v{T0}, s[24:27], s14 offen offset:{2048 * nt + 512 * q}")
    k("s_waitcnt vmcnt(0)")
    k(f"v_lshlrev_b32 v{T2}, 16, v{T2}")
    for nt in range(2):
        PK = V_XF + 8 * nt
        for q in range(4):
            r0 = V_ACC + 16 * nt + 4 * q
            z = Z + 2 * (4 * nt + q)
            for j in range(4):
                round_bf16(k, r0 + j, r0 + j)
                k(f"v_add_f32 v{r0 + j}, v{r0 + j}, v{T2}")
                round_bf16(k, r0 + j, r0 + j)
                if j & 1:
                    k(f"v_and_b32 v{T}, 0xffff0000, v{z + (j >> 1)}")
                else:
                    k(f"v_lshlrev_b32 v{T}, 16, v{z + (j >> 1)}")
                k(f"v_mul_f32 v{r0 + j}, v{r0 + j}, v{T}")
            k(f"v_cvt_pk_bf16_f32 v{PK + 2 * q}, v{r0}, v{r0 + 1}")
            k(f"v_cvt_pk_bf16_f32 v{PK + 2 * q + 1}, v{r0 + 2}, v{r0 + 3}")
        k("s_nop 1")
        for a, b in ((0, 2), (1, 3), (4, 6), (5, 7)):
            k(f"v_permlane32_swap_b32 v{PK + a}, v{PK + b}")
        k("s_nop 1")
        k(f"buffer_store_dwordx4 {vr(PK, 4)}, v{V_L16}, s[28:31], s14 offen offset:{2048 * nt}")
        k(f"buffer_store_dwordx4 {vr(PK + 4, 4)}, v{V_L16}, s[28:31], s14 offen offset:{2048 * nt + 1024}")
    k("s_endpgm")


def gen_ln2_branch(k):
    from k_ln import wave_allreduce_add
    k("s_load_dwordx2 s[10:11], s[0:1], 96")
    k("s_load_dwordx2 s[8:9], s[0:1], 88")
    k("v_and_b32 v1, 63, v0")
    k(f"v_lshrrev_b32 v{T0}, 6, v0")
    k("s_nop 0")
    k(f"v_readfirstlane_b32 s3, v{T0}")
    k("s_nop 3")
    k("s_lshr_b32 s38, s2, 2")
    k("s_waitcnt lgkmcnt(0)")
    wait_for(k, "s38", 14, "ln2", False)
    make_srd(k, 20, 10, 2048 * 1792, add_lo=WS_Z2)
    make_srd(k, 24, 10, 2048 * 1792, add_lo=WS_Z2N)
    k("s_lshl_b32 s14, s2, 5")
    k("s_lshl_b32 s15, s3, 3")
    k("s_add_u32 s14, s14, s15")
    k("s_mul_i32 s14, s14, 1792")
    k("v_lshlrev_b32 v3, 4, v1")
    k("v_cmp_gt_u32 vcc, 56, v1")
    k("v_mov_b32 v4, 0x7ffffff0")
    k("s_nop 1")
    k("v_cndmask_b32 v3, v4, v3, vcc")
    D = 64
    k("s_mov_b32 s15, s14")
    for r in range(8):
        k(f"buffer_load_dwordx4 {vr(D + 8 * r, 4)}, v3, s[20:23], s15 offen sc1")
        k(f"buffer_load_dwordx4 {vr(D + 8 * r + 4, 4)}, v3, s[20:23], s15 offen offset:896 sc1")
        k("s_add_u32 s15, s15, 1792")
    for r in range(8):
        k(f"s_waitcnt vmcnt({14 - 2 * r})")
        X = D + 8 * r
        for i in range(8):
            k(f"v_lshlrev_b32 v{16 + 2 * i}, 16, v{X + i}")
            k(f"v_and_b32 v{17 + 2 * i}, 0xffff0000, v{X + i}")
        k("v_add_f32 v10, v16, v17")
        for i in range(2, 16):
            k(f"v_add_f32 v10, v10, v{16 + i}")
        wave_allreduce_add(k, 10, 11)
        k("v_mul_f32 v10, 0x3a924925, v10")
        k("v_mov_b32 v12, 0")
        for i in range(16):
            k(f"v_sub_f32 v34, v{16 + i}, v10")
            k("v_fmac_f32 v12, v34, v34")
        k("v_cndmask_b32 v12, 0, v12, vcc")
        wave_allreduce_add(k, 12, 11)
        k("v_mul_f32 v12, 0x3a924925, v12")
        round_bf16(k, 10, 10)
        round_bf16(k, 12, 12)
        k("v_add_f32 v12, 0x3727c5ac, v12")
        round_bf16(k, 12, 12)
        k("v_sqrt_f32 v12, v12")
        k("s_nop 0")
        round_bf16(k, 12, 12)
        k("v_rcp_f32 v12, v12")
        k("s_nop 0")
        for i in range(8):
            k(f"v_sub_f32 v34, v{16 + 2 * i}, v10")
            k(f"v_sub_f32 v35, v{17 + 2 * i}, v10")
            k("v_cvt_pk_bf16_f32 v36, v34, v35")
            k("v_lshlrev_b32 v34, 16, v36")
            k("v_and_b32 v35, 0xffff0000, v36")
            k("v_mul_f32 v34, v34, v12")
            k("v_mul_f32 v35, v35, v12")
            k(f"v_cvt_pk_bf16_f32 v{X + i}, v34, v35")
    for r in range(8):
        k(f"buffer_store_dwordx4 {vr(D + 8 * r, 4)}, v3, s[24:27], s14 offen sc1")
        k(f"buffer_store_dwordx4 {vr(D + 8 * r + 4, 4)}, v3, s[24:27], s14 offen offset:896 sc1")
        k("s_add_u32 s14, s14, 1792")
    signal(k, 16, "ln2")
    k("s_endpgm")
```

```python
from asmlib import *
from layout import *


def wave_allreduce_add(k, v, t):
    for m in (1, 2, 4, 8, 16):
        k(f"ds_swizzle_b32 v{t}, v{v} offset:{(m << 10) | 0x1F}")
        k("s_waitcnt lgkmcnt(0)")
        k(f"v_add_f32 v{v}, v{v}, v{t}")
    k(f"v_mov_b32 v{t}, v{v}")
    k("s_nop 1")
    k(f"v_permlane32_swap_b32 v{t}, v{v}")
    k("s_nop 1")
    k(f"v_add_f32 v{v}, v{v}, v{t}")


def round_bf16(k, dst, src):
    k(f"v_cvt_pk_bf16_f32 v{dst}, v{src}, v{src}")
    k(f"v_and_b32 v{dst}, 0xffff0000, v{dst}")


def gen_ln():
    k = Kern("ln")
    k("s_cmp_ge_u32 s2, 512")
    k("s_cbranch_scc1 L_ln_done")
    k("s_load_dwordx2 s[4:5], s[0:1], 0")
    k("s_load_dwordx2 s[6:7], s[0:1], 96")
    k("v_lshrrev_b32 v1, 6, v0")
    k("v_and_b32 v2, 63, v0")
    k("s_lshl_b32 s3, s2, 2")
    k("v_add_u32 v1, s3, v1")
    k("v_mul_u32_u24 v3, 896, v1")
    k("v_lshl_add_u32 v3, v2, 4, v3")
    k("v_cmp_gt_u32 vcc, 56, v2")
    k("v_mov_b32 v4, 0x7ffffff0")
    k("s_nop 1")
    k("v_cndmask_b32 v3, v4, v3, vcc")
    k("s_waitcnt lgkmcnt(0)")
    make_srd(k, 8, 4, 2048 * 896)
    make_srd(k, 12, 6, 2048 * 896, add_lo=WS_XNF)
    k("buffer_load_dwordx4 v[8:11], v3, s[8:11], 0 offen")
    import os
    if 'nolnpf' not in os.environ.get('ABL', ''):
        k("s_load_dwordx2 s[16:17], s[0:1], 24")
        k("s_load_dwordx2 s[18:19], s[0:1], 48")
        k("v_mov_b32 v31, 0x7fffff00")
        k("s_waitcnt lgkmcnt(0)")
        for ptr, nbytes, per in ((16, 448 * 8192, 14), (18, 448 * 3584, 7)):
            make_srd(k, 20, ptr, nbytes)
            k(f"v_mul_u32_u24 v30, {per}, v1")
            k("v_add_u32 v30, v30, v2")
            k("v_lshlrev_b32 v30, 7, v30")
            k(f"v_cmp_gt_u32 s[24:25], {per}, v2")
            k("s_nop 1")
            k("v_cndmask_b32 v30, v31, v30, s[24:25]")
            k("buffer_load_dword v27, v30, s[20:23], 0 offen")
    k("v_lshrrev_b32 v28, 5, v1")
    k("v_mul_u32_u24 v28, 28672, v28")
    k("v_lshrrev_b32 v29, 1, v2")
    k("v_lshl_add_u32 v28, v29, 10, v28")
    k("v_and_b32 v29, 1, v2")
    k("v_lshl_add_u32 v28, v29, 9, v28")
    k("v_and_b32 v29, 31, v1")
    k("v_lshl_add_u32 v28, v29, 4, v28")
    k("v_cndmask_b32 v28, v4, v28, vcc")
    k("s_waitcnt vmcnt(0)" if 'nolnpf' in os.environ.get('ABL', '') else "s_waitcnt vmcnt(2)")
    for i in range(4):
        k(f"v_lshlrev_b32 v{16 + 2 * i}, 16, v{8 + i}")
        k(f"v_and_b32 v{17 + 2 * i}, 0xffff0000, v{8 + i}")
    k("v_add_f32 v5, v16, v17")
    for i in range(2, 8):
        k(f"v_add_f32 v5, v5, v{16 + i}")
    wave_allreduce_add(k, 5, 6)
    k("v_mul_f32 v5, 0x3b124925, v5")
    k("v_mov_b32 v7, 0")
    for i in range(8):
        k(f"v_sub_f32 v24, v{16 + i}, v5")
        k("v_fmac_f32 v7, v24, v24")
    k("v_cndmask_b32 v7, 0, v7, vcc")
    wave_allreduce_add(k, 7, 6)
    k("v_mul_f32 v7, 0x3b124925, v7")
    round_bf16(k, 5, 5)
    round_bf16(k, 7, 7)
    k("v_add_f32 v7, 0x3727c5ac, v7")
    round_bf16(k, 7, 7)
    k("v_sqrt_f32 v7, v7")
    k("s_nop 0")
    round_bf16(k, 7, 7)
    k("v_rcp_f32 v7, v7")
    k("s_nop 0")
    for i in range(4):
        k(f"v_sub_f32 v24, v{16 + 2 * i}, v5")
        k(f"v_sub_f32 v25, v{17 + 2 * i}, v5")
        k("v_cvt_pk_bf16_f32 v26, v24, v25")
        k("v_lshlrev_b32 v24, 16, v26")
        k("v_and_b32 v25, 0xffff0000, v26")
        k("v_mul_f32 v24, v24, v7")
        k("v_mul_f32 v25, v25, v7")
        k(f"v_cvt_pk_bf16_f32 v{8 + i}, v24, v25")
    k("buffer_store_dwordx4 v[8:11], v28, s[12:15], 0 offen")
    k.label("L_ln_done")
    k("s_endpgm")
    return k.text(), dict(vgpr=32, sgpr=32, accum=32)


def gen_ln2():
    k = Kern("ln2")
    k("s_cmp_ge_u32 s2, 512")
    k("s_cbranch_scc1 L_ln2_done")
    k("s_load_dwordx2 s[6:7], s[0:1], 96")
    k("v_lshrrev_b32 v1, 6, v0")
    k("v_and_b32 v2, 63, v0")
    k("s_lshl_b32 s3, s2, 2")
    k("v_add_u32 v1, s3, v1")
    k("v_mul_u32_u24 v3, 1792, v1")
    k("v_lshl_add_u32 v3, v2, 4, v3")
    k("v_cmp_gt_u32 vcc, 56, v2")
    k("v_mov_b32 v4, 0x7ffffff0")
    k("s_nop 1")
    k("v_cndmask_b32 v3, v4, v3, vcc")
    k("s_waitcnt lgkmcnt(0)")
    make_srd(k, 12, 6, 2048 * 1792, add_lo=WS_Z2)
    k("buffer_load_dwordx4 v[8:11], v3, s[12:15], 0 offen")
    k("buffer_load_dwordx4 v[12:15], v3, s[12:15], 0 offen offset:896")
    k("s_waitcnt vmcnt(0)")
    for i in range(8):
        k(f"v_lshlrev_b32 v{16 + 2 * i}, 16, v{8 + i}")
        k(f"v_and_b32 v{17 + 2 * i}, 0xffff0000, v{8 + i}")
    k("v_add_f32 v5, v16, v17")
    for i in range(2, 16):
        k(f"v_add_f32 v5, v5, v{16 + i}")
    wave_allreduce_add(k, 5, 6)
    k("v_mul_f32 v5, 0x3a924925, v5")
    k("v_mov_b32 v7, 0")
    for i in range(16):
        k(f"v_sub_f32 v34, v{16 + i}, v5")
        k("v_fmac_f32 v7, v34, v34")
    k("v_cndmask_b32 v7, 0, v7, vcc")
    wave_allreduce_add(k, 7, 6)
    k("v_mul_f32 v7, 0x3a924925, v7")
    round_bf16(k, 5, 5)
    round_bf16(k, 7, 7)
    k("v_add_f32 v7, 0x3727c5ac, v7")
    round_bf16(k, 7, 7)
    k("v_sqrt_f32 v7, v7")
    k("s_nop 0")
    round_bf16(k, 7, 7)
    k("v_rcp_f32 v7, v7")
    k("s_nop 0")
    for i in range(8):
        k(f"v_sub_f32 v34, v{16 + 2 * i}, v5")
        k(f"v_sub_f32 v35, v{17 + 2 * i}, v5")
        k("v_cvt_pk_bf16_f32 v36, v34, v35")
        k("v_lshlrev_b32 v34, 16, v36")
        k("v_and_b32 v35, 0xffff0000, v36")
        k("v_mul_f32 v34, v34, v7")
        k("v_mul_f32 v35, v35, v7")
        k(f"v_cvt_pk_bf16_f32 v{8 + i}, v34, v35")
    k("buffer_store_dwordx4 v[8:11], v3, s[12:15], 0 offen")
    k("buffer_store_dwordx4 v[12:15], v3, s[12:15], 0 offen offset:896")
    k.label("L_ln2_done")
    k("s_endpgm")
    return k.text(), dict(vgpr=40, sgpr=24, accum=40)


def ln_finish(k, s1, s2, inv_n):
    k(f"v_mul_f32 v{s1}, {inv_n}, v{s1}")
    k(f"v_mul_f32 v{s2}, {inv_n}, v{s2}")
    k(f"v_fma_f32 v{s2}, -v{s1}, v{s1}, v{s2}")
    k(f"v_max_f32 v{s2}, 0, v{s2}")
    round_bf16(k, s1, s1)
    round_bf16(k, s2, s2)
    k(f"v_add_f32 v{s2}, 0x3727c5ac, v{s2}")
    round_bf16(k, s2, s2)
    k(f"v_sqrt_f32 v{s2}, v{s2}")
    k("s_nop 0")
    round_bf16(k, s2, s2)
    k(f"v_rcp_f32 v{s2}, v{s2}")
    k("s_nop 0")


def half_add(k, v, t):
    k(f"v_mov_b32 v{t}, v{v}")
    k("s_nop 1")
    k(f"v_permlane32_swap_b32 v{t}, v{v}")
    k("s_nop 1")
    k(f"v_add_f32 v{v}, v{v}, v{t}")


def reg_ln_stats(k, XF, T, NM, RS):
    A1, A2, U = T, T + 4, T + 8
    for i in range(8):
        k(f"v_mov_b32 v{T + i}, 0")
    for t in range(28):
        k.vm_wait([("x", t)])
        for i in range(4):
            r = XF + 4 * t + i
            u = U + 2 * (i & 1)
            a1, a2 = A1 + 2 * (i & 1), A2 + 2 * (i & 1)
            k(f"v_lshlrev_b32 v{u}, 16, v{r}")
            k(f"v_and_b32 v{u + 1}, 0xffff0000, v{r}")
            k(f"v_pk_add_f32 {vr(a1, 2)}, {vr(a1, 2)}, {vr(u, 2)}")
            k(f"v_pk_fma_f32 {vr(a2, 2)}, {vr(u, 2)}, {vr(u, 2)}, {vr(a2, 2)}")
    for A in (A1, A2):
        k(f"v_add_f32 v{A}, v{A}, v{A + 1}")
        k(f"v_add_f32 v{A + 2}, v{A + 2}, v{A + 3}")
        k(f"v_add_f32 v{A}, v{A}, v{A + 2}")
        half_add(k, A, U)
    ln_finish(k, A1, A2, "0x3b124925")
    k(f"v_sub_f32 v{NM}, 0, v{A1}")
    k(f"v_mov_b32 v{RS}, v{A2}")


def reg_ln_norm_ops(regs, T, NM, RS):
    ops = []
    for i, r in enumerate(regs):
        t = T + 4 * (i & 1)
        ops += [f"v_lshlrev_b32 v{t}, 16, v{r}", f"v_and_b32 v{t + 1}, 0xffff0000, v{r}",
                f"v_pk_add_f32 {vr(t, 2)}, {vr(t, 2)}, {vr(NM, 2)} op_sel_hi:[1,0]",
                f"v_cvt_pk_bf16_f32 v{t + 2}, v{t}, v{t + 1}",
                f"v_lshlrev_b32 v{t}, 16, v{t + 2}", f"v_and_b32 v{t + 1}, 0xffff0000, v{t + 2}",
                f"v_pk_mul_f32 {vr(t, 2)}, {vr(t, 2)}, {vr(RS, 2)} op_sel_hi:[1,0]",
                f"v_cvt_pk_bf16_f32 v{r}, v{t}, v{t + 1}"]
    return ops
```

```python
import sys, os
sys.path.insert(0, 'dev')
os.chdir('dev')
def mk(abl, name, front=True, env=None):
    os.environ['ABL'] = abl
    for k_, v_ in (env or {}).items(): os.environ[k_] = v_
    for m in ('k_ln', 'k_attn', 'k_gemm3', 'gen'):
        if m in sys.modules: del sys.modules[m]
    import gen, k_ln, k_attn, k_gemm3
    L = ("ln_kernel", k_ln.gen_ln, 512, 256, 0)
    A = ("attn_kernel", k_attn.gen_attn, 256, 256, 163840)
    G1 = ("g1_kernel", k_gemm3.gen_g1, 224, 256, k_gemm3.G1_LDS)
    L2 = ("ln2_kernel", k_ln.gen_ln2, 512, 256, 0)
    G2 = ("g2_kernel", k_gemm3.gen_g2, 224, 512, k_gemm3.G2_LDS)
    F = ("fin_kernel", k_gemm3.gen_fin, 224, 512, k_gemm3.FIN_LDS)
    FR = ("front_kernel", gen.gen_front, 480, 256, 163840)
    gen.build([L, FR, L2, G2, F] if front else [L, A, G1, L2, G2, F], name)
    for k_ in (env or {}): del os.environ[k_]
if __name__ == "__main__":
    for spec in sys.argv[1:]:
        name, abl = spec.split("=")
        mk(abl, name + ".s")
```

```python
import sys, os
sys.path.insert(0, os.path.dirname(__file__))
from asmlib import *
import k_ln, k_attn, k_gemm3

HEADER = open(os.path.join(os.path.dirname(__file__), "..", "cdna_kernels",
    "recurrent_scan__mha_block_cached__mixer_gmlp__prompt.s.ref")).read().split("; Override launch")[0]

def add_span(body, idx):
    lines = body.split("\n")
    out = ["    s_memrealtime s[90:91]", "    s_load_dwordx2 s[92:93], s[0:1], 96", "    s_mov_b32 s100, s2"]
    n = 0
    for ln in lines:
        if ln.strip() == "s_endpgm":
            n += 1
            out += ["    s_waitcnt vmcnt(0) lgkmcnt(0)", "    s_memrealtime s[94:95]", "    s_waitcnt lgkmcnt(0)",
                    f"    s_add_u32 s96, s92, {0x8000000 + idx * 0x10000}", "    s_addc_u32 s97, s93, 0",
                    "    s_mov_b32 s98, 0x10000", "    s_mov_b32 s99, 0x00020000",
                    "    s_lshl_b32 s100, s100, 4", "    v_mov_b32 v0, s100", "    v_mov_b32 v2, s90", "    v_mov_b32 v3, s94",
                    "    buffer_store_dwordx2 v[2:3], v0, s[96:99], 0 offen"]
        out.append(ln)
    return "\n".join(out)


def add_span2(body, idx):
    lines = body.split("\n")
    out = ["    s_memrealtime s[90:91]", "    s_load_dwordx2 s[92:93], s[0:1], 88", "    s_mov_b32 s100, s2"]
    for ln in lines:
        if ln.strip() == "s_endpgm":
            out += ["    s_waitcnt vmcnt(0) lgkmcnt(0)", "    s_memrealtime s[94:95]", "    s_waitcnt lgkmcnt(0)",
                    f"    s_sub_u32 s96, s92, {512 * (idx - 1)}", "    s_subb_u32 s97, s93, 0",
                    "    s_mov_b32 s98, 256", "    s_mov_b32 s99, 0x00020000",
                    "    s_cmp_eq_u32 s100, 0", "    s_cselect_b32 s100, 0, 0x1000",
                    f"    s_add_u32 s100, s100, {8 * (idx - 1)}", "    v_mov_b32 v0, s100", "    v_mov_b32 v2, s90", "    v_mov_b32 v3, s94",
                    "    buffer_store_dwordx2 v[2:3], v0, s[96:99], 0 offen"]
        out.append(ln)
    return "\n".join(out)


def build(kernels, out):
    s = HEADER
    for name, fn, grid, block, lds in kernels:
        s += f"; @launch kernel={name} grid=({grid},1,1) block=({block},1,1) lds={lds}\n"
    s += '.amdgcn_target "amdgcn-amd-amdhsa--gfx950"\n.text\n'
    descs = ""
    seen = set()
    for name, fn, grid, block, lds in kernels:
        if name in seen: continue
        seen.add(name)
        body, res = fn()
        if os.environ.get("SPAN") == "2":
            body = add_span2(body, len(seen))
        elif os.environ.get("SPAN"):
            body = add_span(body, len(seen))
        s += kernel_header(name) + body
        descs += kernel_desc(name, res["vgpr"], 102 if os.environ.get("SPAN") else res["sgpr"], res["accum"])
    s += 'L_text_end:\n    s_endpgm\n.section .rodata,"a"\n' + descs
    open(out, "w").write(s)

def gen_front():
    k = Kern("front")
    k("s_cmp_ge_u32 s2, 480")
    k("s_cbranch_scc1 L_g1_done")
    if 'afirst' in os.environ.get('ABL', ''):
        k("s_cmp_ge_u32 s2, 256")
        k("s_cbranch_scc1 L_front_g1")
        k_attn.gen_attn(k)
        k.label("L_front_g1")
        k("s_sub_u32 s2, s2, 256")
        k_gemm3.gen_g1(k)
        return k.text(), dict(vgpr=512, sgpr=96, accum=256)
    k("s_cmp_lt_u32 s2, 224")
    k("s_cbranch_scc1 L_front_g1")
    k("s_sub_u32 s2, s2, 224")
    k_attn.gen_attn(k)
    k.label("L_front_g1")
    if 'g1b' in os.environ.get('ABL', ''):
        k_gemm3.gen_g1b(k)
        k.label("L_g1_done")
        k("s_endpgm")
    else:
        k_gemm3.gen_g1(k)
    return k.text(), dict(vgpr=512, sgpr=96, accum=256)


def gen_front3():
    k = Kern("front")
    k("s_cmp_ge_u32 s2, 544")
    k("s_cbranch_scc1 L_g1_done")
    k("s_cmp_lt_u32 s2, 64")
    k("s_cbranch_scc1 L_front_ln")
    k("s_cmp_lt_u32 s2, 288")
    k("s_cbranch_scc1 L_front_g1")
    k("s_sub_u32 s2, s2, 288")
    k_attn.gen_attn(k, waitxn=True)
    k.label("L_front_ln")
    k_gemm3.gen_ln_branch(k)
    k.label("L_front_g1")
    k("s_sub_u32 s2, s2, 64")
    k_gemm3.gen_g1(k, waitxn=True)
    return k.text(), dict(vgpr=512, sgpr=96, accum=256)


def gen_mega():
    k = Kern("mega")
    k("s_cmp_ge_u32 s2, 768")
    k("s_cbranch_scc1 L_g1_done")
    k("s_cmp_lt_u32 s2, 224")
    k("s_cbranch_scc1 L_mega_g1")
    k("s_cmp_ge_u32 s2, 544")
    k("s_cbranch_scc1 L_mega_g2")
    k("s_cmp_lt_u32 s2, 288")
    k("s_cbranch_scc1 L_mega_ln2")
    k("s_sub_u32 s2, s2, 288")
    k_attn.gen_attn(k)
    k.label("L_mega_ln2")
    k("s_sub_u32 s2, s2, 224")
    k_gemm3.gen_ln2_branch(k)
    k.label("L_mega_g2")
    k("s_sub_u32 s2, s2, 544")
    k_gemm3.gen_g2_4w(k)
    k.label("L_mega_g1")
    k_gemm3.gen_g1(k, sync=True)
    return k.text(), dict(vgpr=512, sgpr=96, accum=256)


def gen_front2():
    k = Kern("front")
    k("s_cmp_ge_u32 s2, 512")
    k("s_cbranch_scc1 L_g1_done")
    k("s_cmp_lt_u32 s2, 224")
    k("s_cbranch_scc1 L_front_g1")
    k("s_cmp_ge_u32 s2, 480")
    k("s_cbranch_scc1 L_front_ln2")
    k("s_sub_u32 s2, s2, 224")
    k_attn.gen_attn(k)
    k.label("L_front_ln2")
    k("s_sub_u32 s2, s2, 480")
    k_gemm3.gen_ln2_branch(k)
    k.label("L_front_g1")
    k_gemm3.gen_g1(k, sync=True)
    return k.text(), dict(vgpr=512, sgpr=96, accum=256)


KERNELS = [
    ("ln_kernel", k_ln.gen_ln, 512, 256, 0),
    ("front_kernel", gen_front, 480, 256, 163840),
    ("ln2_kernel", k_ln.gen_ln2, 512, 256, 0),
    ("g2_kernel", k_gemm3.gen_g2, 224, 512, k_gemm3.G2_LDS),
    ("fin_kernel", k_gemm3.gen_fin, 224, 512, k_gemm3.FIN_LDS),
]

if os.environ.get("FRONT3"):
    KERNELS = [("front_kernel", gen_front3, 544, 256, 163840)] + KERNELS[2:]

if os.environ.get("ONLYATTN"):
    KERNELS = [("ln_kernel", k_ln.gen_ln, 512, 256, 0), ("attn_kernel", k_attn.gen_attn, 256, 256, 163840)]

if __name__ == "__main__":
    out = sys.argv[1] if len(sys.argv) > 1 else os.path.join(os.path.dirname(__file__), "..", "cdna_kernels",
        "recurrent_scan__mha_block_cached__mixer_gmlp__prompt.s")
    build(KERNELS, out)
    print("wrote", out)
```

```python
from asmlib import *
from layout import *
from k_ln import reg_ln_stats, reg_ln_norm_ops
import os
ABL = os.environ.get('ABL', '').split(',')

S_K, S_V, S_WQ, S_XN, S_O = 16, 20, 24, 28, 32
S_KOFF, S_VOFF, S_CNT, S_WOFF, S_W4K = 36, 37, 38, 39, 40
S_M0K, S_M0V = 42, 45
S_HEAD, S_QB, S_OB, S_PF = 12, 13, 48, 49
V_PF = 45
V_WPF, S_WPF = 56, 88
V_LANE, V_L31, V_H = 1, 2, 3
V_KA, V_VA, V_WA, V_DK, V_DV, V_DW = 8, 16, 20, 24, 28, 30
V_L, V_TS, V_SA, V_SB, V_E, V_MX, V_TMP, V_ALPHA = 34, 35, 36, 37, 38, 42, 43, 44
V_P = 48
V_NEGM = 64
V_S = [80, 96, 112]
V_VF = 128
V_XN = 128
A_O, A_Q, A_KF = 0, 128, 192

LDS_K, LDS_V = 0, 49152
SLOT = 16384
QSCALE = 0x3db8aa3b
THRESH = 0x44800000


def mfma(d, a, b, c):
    return f"v_mfma_f32_32x32x16_bf16 {d}, {a}, {b}, {c}"


def softmax_ops(T):
    ops = []
    E = V_E

    def exps(i):
        e = E + 2 * (i & 1)
        return [f"v_exp_f32 v{e}, v{T + 2 * i}", f"v_exp_f32 v{e + 1}, v{T + 2 * i + 1}"]

    def post(i):
        e = E + 2 * (i & 1)
        if i == 0:
            o = [f"v_add_f32 v{V_SA}, v{e}, v{e + 1}"]
        elif i == 1:
            o = [f"v_add_f32 v{V_SB}, v{e}, v{e + 1}"]
        else:
            o = [f"v_add_f32 v{V_SA}, v{V_SA}, v{e}", f"v_add_f32 v{V_SB}, v{V_SB}, v{e + 1}"]
        o.append(f"v_cvt_pk_bf16_f32 v{V_P + i}, v{e}, v{e + 1}")
        return o

    ops += exps(0)
    for i in range(1, 8):
        ops += exps(i)
        ops += post(i - 1)
    ops += ["s_nop 0"] + post(7)
    return ops


def k_read(t, slot):
    off = LDS_K + slot * SLOT + (t >> 3) * 256
    return f"ds_read_b128 {ar(A_KF + 4 * t, 4)}, v{V_KA + (t & 7)} offset:{off}"


def v_read(i, u, slot):
    ks, dt = i // 8, i % 8
    off = slot * SLOT + ks * 8192 + u * 4096 + (dt >> 2) * 256
    return f"ds_read_b64_tr_b16 {vr(V_VF + 4 * i + 2 * u, 2)}, v{V_VA + (dt & 3)} offset:{off}"


def pv_mfma(i, first=False):
    ks, dt = i // 8, i % 8
    o = ar(A_O + 16 * dt, 16)
    return mfma(o, vr(V_VF + 4 * i, 4), vr(V_P + 4 * ks, 4), "0" if (first and ks == 0) else o)


def dma_ops(kslot, vslot, dk=True, dv=True):
    ops = []
    if dk:
        ops += [f"s_mov_b32 m0, s{S_M0K + kslot}", "s_nop 0"]
        for i in range(4):
            ops.append(f"buffer_load_dwordx4 v{V_DK + i}, {sr(S_K, 4)}, s{S_KOFF} offen offset:{1024 * i} lds")
        ops.append(f"s_add_u32 s{S_KOFF}, s{S_KOFF}, {SLOT}")
    if not dv:
        return ops
    ops += [f"s_mov_b32 m0, s{S_M0V + vslot}", "s_nop 0"]
    for i in range(4):
        ops.append(f"buffer_load_dwordx4 v{V_DV + (i & 1)}, {sr(S_V, 4)}, s{S_VOFF} offen offset:{1024 * i} lds")
    ops.append(f"s_add_u32 s{S_VOFF}, s{S_VOFF}, {SLOT}")
    return ops


def gen_slow(k, lab, back, T, N):
    k.label(lab)
    k("s_nop 15")
    k("s_nop 7")
    k(f"v_max3_f32 v{V_MX}, v{T}, v{T + 1}, v{T + 2}")
    for i in range(3, 15, 2):
        k(f"v_max3_f32 v{V_MX}, v{V_MX}, v{T + i}, v{T + i + 1}")
    k(f"v_max_f32 v{V_MX}, v{V_MX}, v{T + 15}")
    k(f"v_mov_b32 v{V_TMP}, v{V_MX}")
    k("s_nop 1")
    k(f"v_permlane32_swap_b32 v{V_TMP}, v{V_MX}")
    k("s_nop 1")
    k(f"v_max_f32 v{V_MX}, v{V_MX}, v{V_TMP}")
    k(f"v_max_f32 v{V_MX}, 0, v{V_MX}")
    k(f"v_sub_f32 v{V_ALPHA}, 0, v{V_MX}")
    k(f"v_exp_f32 v{V_ALPHA}, v{V_ALPHA}")
    for i in range(16):
        k(f"v_sub_f32 v{T + i}, v{T + i}, v{V_MX}")
        k(f"v_sub_f32 v{N + i}, v{N + i}, v{V_MX}")
        k(f"v_sub_f32 v{V_NEGM + i}, v{V_NEGM + i}, v{V_MX}")
    k(f"v_mul_f32 v{V_L}, v{V_L}, v{V_ALPHA}")
    for i in range(128):
        t = V_E + (i & 3)
        k(f"v_accvgpr_read_b32 v{t}, a{A_O + i}")
        k(f"v_mul_f32 v{t}, v{t}, v{V_ALPHA}")
        k(f"v_accvgpr_write_b32 a{A_O + i}, v{t}")
    for o in softmax_ops(T):
        k(o)
    k(f"v_add_f32 v{V_TS}, v{V_SA}, v{V_SB}")
    k("s_nop 3")
    k(f"s_branch {back}")


def gen_iter(k, j3, first, slow_list, pos=None, wtrip=False, dk=True, dv=True, noqk=False, endwait=None):
    cur, nxt = V_S[j3], V_S[(j3 + 1) % 3]
    kslot, vslot = (j3 + 1) % 3, j3
    M = []
    if not first:
        for i in range(12, 16):
            M.append((pv_mfma(i), []))
    for t in range(0 if noqk else 16):
        c = vr(V_NEGM, 16) if t == 0 else vr(nxt, 16)
        M.append((mfma(vr(nxt, 16), ar(A_KF + 4 * t, 4), ar(A_Q + 4 * t, 4), c), [("k", t)]))
    for i in range(12):
        M.append((pv_mfma(i, first), [("v", i, 0), ("v", i, 1)]))
    nm = len(M)
    q0 = 0 if first else 4
    p0 = q0 + (0 if noqk else 16)
    fill = {g: [] for g in range(-1, nm)}
    for t in range(0 if noqk else 16):
        g = max(-1, q0 + t - int(os.environ.get('KLEAD', 6)))
        fill[g].append(("ds", k_read(t, kslot), ("k", t)))
    sm = softmax_ops(cur)
    if noqk:
        cut = next(i for i, o in enumerate(sm) if o.startswith(f"v_cvt_pk_bf16_f32 v{V_P + 4},"))
        for g, ops in spread(nm, sm[:cut], -1, p0 - 1).items():
            fill[g] += [("valu", o, None) for o in ops]
        fill[p0 - 1] += [("valu", o, None) for o in sm[cut:]]
    else:
        for g, ops in spread(nm, sm, -1 if first else 0, p0 - 1).items():
            fill[g] += [("valu", o, None) for o in ops]
    vreads = [(i, u) for i in range(16) for u in range(2)]
    for g, items in spread(nm, vreads, max(-1, p0 - int(os.environ.get('VLEAD', 7))), nm - 2).items():
        fill[g] += [("ds", v_read(i, u, vslot), ("v", i, u)) for (i, u) in items]
    dstart = {'p0': p0, 'all': 0, 'q0': q0}[os.environ.get('DSTART', 'p0')]
    dops = dma_ops(j3, (j3 + 2) % 3, dk, dv)
    for g, ops in (spread(nm, dops, dstart, nm - 1).items() if dops else []):
        if 'nodma' in ABL: continue
        fill[g] += [("raw", o, None) for o in ops]
    if 'nosm' in ABL:
        for g in fill: fill[g] = [f for f in fill[g] if f[0] != 'valu']
    if 'nov' in ABL:
        for g in fill: fill[g] = [f for f in fill[g] if not (f[0] == 'ds' and f[2][0] == 'v')]
    if 'nok' in ABL:
        for g in fill: fill[g] = [f for f in fill[g] if not (f[0] == 'ds' and f[2][0] == 'k')]

    def emit_fill(g):
        for kind, text, tag in fill[g]:
            if kind == "ds":
                k.ds(text, tag)
            else:
                k(text)

    emit_fill(-1)
    for idx, (text, tags) in enumerate(M):
        if idx == p0:
            slow = k.newlabel("slow")
            back = k.newlabel("back")
            k(f"v_add_f32 v{V_TS}, v{V_SA}, v{V_SB}")
            k(f"v_cmp_lt_f32 vcc, {THRESH}, v{V_TS}")
            k("s_nop 1")
            k(f"s_cbranch_vccnz {slow}")
            k.label(back)
            k(f"v_add_f32 v{V_L}, v{V_L}, v{V_TS}")
            slow_list.append((slow, back, cur, nxt))
        if tags:
            k.ds_wait(tags)
        if 'm16' in ABL:
            import re
            m_ = re.match(r"v_mfma_f32_32x32x16_bf16 (\w)\[(\d+):\d+\], (\S+), (\S+), (\w)\[(\d+):\d+\]", text)
            dt_, d0, a_, b_, ct_, c0 = m_.group(1), int(m_.group(2)), m_.group(3), m_.group(4), m_.group(5), int(m_.group(6))
            fl = fill[idx]
            half = len(fl) // 2
            k(f"v_mfma_f32_16x16x32_bf16 {dt_}[{d0}:{d0+3}], {a_} {b_} {ct_}[{c0}:{c0+3}]".replace(", a[", ", a[") if False else
              f"v_mfma_f32_16x16x32_bf16 {dt_}[{d0}:{d0+3}], {a_.rstrip(',')}, {b_.rstrip(',')}, {ct_}[{c0}:{c0+3}]")
            fill[idx] = fl[:half]
            emit_fill(idx)
            k(f"v_mfma_f32_16x16x32_bf16 {dt_}[{d0+4}:{d0+7}], {a_.rstrip(',')}, {b_.rstrip(',')}, {ct_}[{c0+4}:{c0+7}]")
            fill[idx] = fl[half:]
            emit_fill(idx)
            continue
        k(text)
        emit_fill(idx)
    kv = 'kvpf' in ABL and pos is not None
    if kv and pos == 0:
        k(f"buffer_load_dword v7, v{V_PF}, {sr(S_K, 4)}, s{S_PF} offen")
        k(f"buffer_load_dword v7, v{V_PF}, {sr(S_V, 4)}, s{S_PF} offen")
        k(f"s_add_u32 s{S_PF}, s{S_PF}, {3 * SLOT}")
    wpf = 'nopf' not in ABL and pos is not None and wtrip
    if wpf and pos == 0:
        for j in range(4):
            k(f"buffer_load_dword v7, v{V_WPF + j}, {sr(72 + 4 * j, 4)}, s{S_WPF} offen")
    extra_vm = (2 if kv else 0) + (4 if wpf else 0)
    if endwait is None:
        endwait = 8 + extra_vm if (pos is not None and pos < 2) else 8
    k(f"s_waitcnt vmcnt({endwait}) lgkmcnt(0)")
    k.lds_q = []
    if 'nobar' not in ABL: k("s_barrier")


def gen_attn(k=None, waitxn=False):
    own = k is None
    if own:
        k = Kern("attn")
        k("s_cmp_ge_u32 s2, 256")
        k("s_cbranch_scc1 L_attn_done")
    k.vm_q = []
    k.lds_q = []
    k("s_load_dwordx2 s[70:71], s[0:1], 88")
    k("s_load_dwordx2 s[4:5], s[0:1], 8")
    k("s_load_dwordx2 s[6:7], s[0:1], 16")
    k("s_load_dwordx2 s[8:9], s[0:1], 24")
    k("s_load_dwordx2 s[10:11], s[0:1], 96")
    if 'stamp' in ABL:
        k("s_load_dwordx2 s[66:67], s[0:1], 88")
        k("s_memtime s[50:51]")
        k("s_memrealtime s[52:53]")
    k("s_and_b32 s14, s2, 7")
    k("s_lshr_b32 s15, s2, 3")
    k(f"s_lshr_b32 s{S_HEAD}, s15, 4")
    k(f"s_lshl_b32 s14, s14, 1")
    k(f"s_add_u32 s{S_HEAD}, s{S_HEAD}, s14")
    k(f"s_and_b32 s{S_QB}, s15, 15")
    if 'badmap' in ABL:
        k(f"s_lshr_b32 s{S_HEAD}, s2, 4")
        k(f"s_and_b32 s{S_QB}, s2, 15")
    k(f"v_and_b32 v{V_LANE}, 63, v0")
    k(f"v_and_b32 v{V_L31}, 31, v0")
    k(f"v_bfe_u32 v{V_H}, v0, 5, 1")
    k("v_lshrrev_b32 v4, 6, v0")
    k("s_nop 0")
    k(f"v_readfirstlane_b32 s3, v4")
    k("s_nop 3")
    k(f"s_lshl_b32 s{S_W4K}, s3, 12")
    for i in range(3):
        k(f"s_add_u32 s{S_M0K + i}, s{S_W4K}, {LDS_K + i * SLOT}")
        k(f"s_add_u32 s{S_M0V + i}, s{S_W4K}, {LDS_V + i * SLOT}")
    k("s_waitcnt lgkmcnt(0)")
    k(f"s_lshl_b32 s14, s{S_HEAD}, 20")
    make_srd(k, S_K, 4, 1 << 20, add_lo="s14")
    make_srd(k, S_V, 6, 1 << 20, add_lo="s14")
    make_srd(k, S_WQ, 8, 448 * 8192)
    make_srd(k, S_XN, 10, 2048 * 896, add_lo=WS_XNF)
    make_srd(k, S_O, 10, 2048 * 8192, add_lo=WS_OF)

    k(f"v_and_b32 v5, 15, v{V_L31}")
    k(f"v_lshlrev_b32 v6, 9, v{V_L31}")
    for tt in range(8):
        k(f"v_add_u32 v7, {2 * tt}, v{V_H}")
        k("v_xor_b32 v7, v7, v5")
        k(f"v_lshl_add_u32 v{V_KA + tt}, v7, 4, v6")
    k(f"v_bfe_u32 v5, v{V_LANE}, 2, 2")
    k(f"v_and_b32 v6, 3, v{V_LANE}")
    k(f"v_bfe_u32 v7, v{V_LANE}, 4, 1")
    k("v_lshlrev_b32 v46, 3, v6")
    k("v_lshl_add_u32 v46, v7, 5, v46")
    k(f"v_lshl_add_u32 v47, v{V_H}, 2, v5")
    k(f"v_lshl_add_u32 v45, v{V_H}, 3, v5")
    for d in range(4):
        k(f"v_xor_b32 v7, {d}, v5")
        k("v_lshl_add_u32 v7, v7, 6, v46")
        k(f"v_lshl_add_u32 v{V_VA + d}, v47, 9, v7")
        k(f"v_add_u32 v{V_VA + d}, {LDS_V}, v{V_VA + d}")
        k(f"v_lshl_add_u32 v{V_WA + d}, v45, 9, v7")
        k(f"v_add_u32 v{V_WA + d}, {LDS_V}, v{V_WA + d}")
    k("s_and_b32 s14, s3, 1")
    k("s_lshl_b32 s14, s14, 3")
    k(f"v_xor_b32 v5, s14, v{V_L31}")
    k(f"v_xor_b32 v5, v5, v{V_H}")
    k(f"v_lshlrev_b32 v6, 9, v{V_H}")
    k(f"v_add_u32 v6, s{S_W4K}, v6")
    for i in range(4):
        k(f"v_xor_b32 v7, {2 * i}, v5")
        k(f"v_lshl_add_u32 v{V_DK + i}, v7, 4, v6")
    for i in range(2):
        k(f"v_add_u32 v7, {2 * i}, v{V_H}")
        k("v_lshlrev_b32 v7, 2, v7")
        k(f"v_xor_b32 v7, v7, v{V_L31}")
        k(f"v_lshl_add_u32 v{V_DV + i}, v7, 4, v6")
    k("s_lshl_b32 s14, s3, 16")
    k(f"v_lshlrev_b32 v6, 13, v{V_H}")
    k("v_add_u32 v6, s14, v6")
    for i in range(4):
        k(f"v_add_u32 v7, {(2 * i) & 3}, v{V_H}")
        k("v_lshlrev_b32 v7, 2, v7")
        k(f"v_xor_b32 v7, v7, v{V_L31}")
        k(f"v_lshl_add_u32 v{V_DW + i}, v7, 4, v6")
        k(f"v_add_u32 v{V_DW + i}, {2 * i * 8192}, v{V_DW + i}")
    k(f"s_lshl_b32 s{S_WOFF}, s{S_HEAD}, 9")
    k(f"s_mov_b32 s{S_KOFF}, 0")
    k(f"s_mov_b32 s{S_VOFF}, 0")

    NWS = 7

    def wq_dma(ch):
        slot = ch % NWS
        for i in range(4):
            k(f"s_add_u32 m0, s{S_M0V}, {slot * SLOT + 1024 * i}")
            k("s_nop 0")
            k.vm(f"buffer_load_dwordx4 v{V_DW + i}, {sr(S_WQ, 4)}, s{S_WOFF} offen lds", ("w", ch))
        k(f"s_add_u32 s{S_WOFF}, s{S_WOFF}, {32 * 8192}")

    def k_dma(slot, tag):
        k(f"s_mov_b32 m0, s{S_M0K + slot}")
        k("s_nop 0")
        for i in range(4):
            k.vm(f"buffer_load_dwordx4 v{V_DK + i}, {sr(S_K, 4)}, s{S_KOFF} offen offset:{1024 * i} lds", tag)
        k(f"s_add_u32 s{S_KOFF}, s{S_KOFF}, {SLOT}")

    def v_dma(slot, tag):
        k(f"s_mov_b32 m0, s{S_M0V + slot}")
        k("s_nop 0")
        for i in range(4):
            k.vm(f"buffer_load_dwordx4 v{V_DV + (i & 1)}, {sr(S_V, 4)}, s{S_VOFF} offen offset:{1024 * i} lds", tag)
        k(f"s_add_u32 s{S_VOFF}, s{S_VOFF}, {SLOT}")

    def wq_ops(ch):
        slot = ch % NWS
        ops = []
        for i in range(4):
            ops.append([f"s_add_u32 m0, s{S_M0V}, {slot * SLOT + 1024 * i}", "s_nop 0",
                        (f"buffer_load_dwordx4 v{V_DW + i}, {sr(S_WQ, 4)}, s{S_WOFF} offen lds", ("w", ch))])
        ops[-1].append(f"s_add_u32 s{S_WOFF}, s{S_WOFF}, {32 * 8192}")
        return ops

    def x_ops(t):
        o = [(f"buffer_load_dwordx4 {vr(V_XN + 4 * t, 4)}, v4, {sr(S_XN, 4)}, s15 offen offset:{1024 * (t & 3)}{' sc1' if waitxn else ''}", ("x", t))]
        if t & 3 == 3:
            o.append("s_add_u32 s15, s15, 4096")
        return [o]

    def kv_ops(which, slot, tag):
        m0, dreg, srd, off = (S_M0K, V_DK, S_K, S_KOFF) if which == "K" else (S_M0V, V_DV, S_V, S_VOFF)
        ops = []
        for i in range(4):
            d = dreg + (i if which == "K" else (i & 1))
            ops.append([f"s_mov_b32 m0, s{m0 + slot}", "s_nop 0",
                        (f"buffer_load_dwordx4 v{d}, {sr(srd, 4)}, s{off} offen offset:{1024 * i} lds", tag)])
        ops[-1].append(f"s_add_u32 s{off}, s{off}, {SLOT}")
        return ops

    def emit_ops(group):
        for o in group:
            if isinstance(o, tuple):
                k.vm(o[0], o[1])
            else:
                k(o)

    k(f"s_lshl_b32 s14, s{S_QB}, 2")
    k("s_add_u32 s14, s14, s3")
    if waitxn:
        import k_gemm3
        k("s_mov_b32 s61, s14")
        k("s_mov_b64 s[62:63], s[8:9]")
        k("s_mov_b64 s[8:9], s[70:71]")
        k(f"s_add_u32 s60, s{S_QB}, 32")
        k_gemm3.wait_for(k, "s60", 4, "atx", False, 5, 6)
        k("s_mov_b64 s[8:9], s[62:63]")
        k("s_mov_b32 s14, s61")
    k("s_mul_i32 s15, s14, 28672")
    k(f"v_lshlrev_b32 v4, 4, v{V_LANE}")
    for ch in range(3):
        for g_ in wq_ops(ch) + x_ops(2 * ch) + x_ops(2 * ch + 1):
            emit_ops(g_)
    k(f"s_lshl_b32 s{S_OB}, s14, 18")
    k(f"s_lshl_b32 s14, s{S_HEAD}, 14")
    k(f"s_add_u32 s{S_OB}, s{S_OB}, s14")
    V_WA2 = 56
    for d in range(4):
        k(f"v_add_u32 v{V_WA2 + d}, 0x10000, v{V_WA + d}")
    kq = kv_ops("K", 0, ("K", 0)) + kv_ops("K", 1, ("K", 1)) + kv_ops("K", 2, ("K", 2))
    vq = kv_ops("V", 0, ("V", 0)) + kv_ops("V", 1, ("V", 1))

    FS = [A_KF, A_Q]

    def q_mfmas(ch):
        out = []
        for ks in range(2):
            for dt in range(8):
                i = ks * 8 + dt
                o = ar(A_O + 16 * dt, 16)
                c = "0" if (ch == 0 and ks == 0) else o
                out.append(mfma(o, ar(FS[ch & 1] + 4 * i, 4), vr(V_XN + 4 * (2 * ch + ks), 4), c))
        return out

    for ch in range(15):
        mf = q_mfmas(ch - 1) if ch >= 1 else []
        if ch >= 1:
            k.vm_wait([("x", 2 * ch - 2), ("x", 2 * ch - 1)])
        if ch == 14:
            k("s_waitcnt lgkmcnt(0)")
            for m in mf:
                k(m)
            break
        slot = ch % NWS
        k.vm_wait([("w", ch)])
        k("s_waitcnt lgkmcnt(0)")
        k("s_barrier")
        if 'stamp' in ABL and ch == 0:
            k("s_memtime s[90:91]")
        extra = []
        if ch + 3 < 14:
            extra += wq_ops(ch + 3) + x_ops(2 * ch + 6) + x_ops(2 * ch + 7)
        if ch >= 2:
            extra += kq[:2]
            kq = kq[2:]
        if ch >= 10:
            extra += vq[:2]
            vq = vq[2:]
        no = []
        for ks in range(2):
            for dt in range(8):
                i = ks * 8 + dt
                for u in range(2):
                    off = slot * SLOT + ks * 8192 + u * 2048 + (dt >> 2) * 256
                    wa = V_WA
                    if off >= 65536:
                        off -= 65536
                        wa = V_WA2
                    k(f"ds_read_b64_tr_b16 {ar(FS[ch & 1] + 4 * i + 2 * u, 2)}, v{wa + (dt & 3)} offset:{off}")
                if mf:
                    k(mf[i])
                for o in no[4 * i: 4 * i + 4]:
                    k(o)
                if i % 2 == 1 and extra:
                    emit_ops(extra.pop(0))
        for g_ in extra:
            emit_ops(g_)
    assert not kq and not vq
    if 'stamp' in ABL:
        k("s_memtime s[92:93]")
    k.vm_wait([("K", 0), ("K", 1), ("V", 0)])
    k("s_barrier")
    for t in range(16):
        k.ds(k_read(t, 0), ("k", t))
    k("s_nop 7")
    T0 = V_S[2]
    PK = V_S[1]
    S0 = V_S[0]
    k(f"s_mov_b32 s14, {QSCALE}")
    k(f"s_mov_b32 s15, {QSCALE}")
    for dt in range(8):
        for r in range(16):
            k(f"v_accvgpr_read_b32 v{T0 + r}, a{A_O + 16 * dt + r}")
        for r in range(0, 16, 2):
            k(f"v_pk_mul_f32 {vr(T0 + r, 2)}, {vr(T0 + r, 2)}, s[14:15]")
        for i in range(8):
            k(f"v_cvt_pk_bf16_f32 v{PK + i}, v{T0 + 2 * i}, v{T0 + 2 * i + 1}")
        k("s_nop 1")
        for a_, b_ in ((0, 2), (1, 3), (4, 6), (5, 7)):
            k(f"v_permlane32_swap_b32 v{PK + a_}, v{PK + b_}")
        k("s_nop 1")
        for i in range(8):
            k(f"v_accvgpr_write_b32 a{A_Q + 8 * dt + i}, v{PK + i}")
        k("s_nop 1")
        for t in (2 * dt, 2 * dt + 1):
            k.ds_wait([("k", t)])
            c = "0" if t == 0 else vr(S0, 16)
            k(mfma(vr(S0, 16), ar(A_KF + 4 * t, 4), ar(A_Q + 4 * t, 4), c))
    if 'stamp' in ABL:
        k("s_memtime s[94:95]")
    k("s_nop 15")
    k("s_nop 3")
    k(f"v_max3_f32 v{V_MX}, v{S0}, v{S0 + 1}, v{S0 + 2}")
    for i in range(3, 15, 2):
        k(f"v_max3_f32 v{V_MX}, v{V_MX}, v{S0 + i}, v{S0 + i + 1}")
    k(f"v_max_f32 v{V_MX}, v{V_MX}, v{S0 + 15}")
    k(f"v_mov_b32 v{V_TMP}, v{V_MX}")
    k("s_nop 1")
    k(f"v_permlane32_swap_b32 v{V_TMP}, v{V_MX}")
    k("s_nop 1")
    k(f"v_max_f32 v{V_MX}, v{V_MX}, v{V_TMP}")
    for i in range(16):
        k(f"v_sub_f32 v{S0 + i}, v{S0 + i}, v{V_MX}")
        k(f"v_sub_f32 v{V_NEGM + i}, 0, v{V_MX}")
    k(f"v_mov_b32 v{V_L}, 0")
    k("s_barrier")
    k.vm_q = []

    if 'nopf' not in ABL:
        k("s_load_dwordx2 s[72:73], s[0:1], 56")
        k("s_load_dwordx2 s[76:77], s[0:1], 32")
        k("s_load_dwordx2 s[80:81], s[0:1], 48")
        k("s_load_dwordx2 s[84:85], s[0:1], 72")
        k("s_lshl_b32 s14, s2, 2")
        k("s_add_u32 s14, s14, s3")
        k("v_mov_b32 v6, 0x7fffff00")
        k("s_waitcnt lgkmcnt(0)")
        for j, (ptr, nbytes, per) in enumerate(((72, 2048 * 4096, 64), (76, 4096 * 896, 28), (80, 448 * 3584, 13), (84, 896 * 896, 7))):
            k(f"s_mov_b32 s{ptr + 2}, {nbytes}")
            k(f"s_mov_b32 s{ptr + 3}, 0x00020000")
            k(f"s_mul_i32 s15, s14, {per * 128}")
            k(f"v_lshlrev_b32 v{V_WPF + j}, 7, v{V_LANE}")
            k(f"v_add_u32 v{V_WPF + j}, s15, v{V_WPF + j}")
            if per < 64:
                k(f"v_cmp_gt_u32 vcc, {per}, v{V_LANE}")
                k("s_nop 1")
                k(f"v_cndmask_b32 v{V_WPF + j}, v6, v{V_WPF + j}, vcc")
        k(f"s_mov_b32 s{S_WPF}, 0")
    if 'kvpf' in ABL:
        k(f"s_lshl_b32 s14, s{S_QB}, 2")
        k("s_add_u32 s14, s14, s3")
        k("v_mov_b32 v6, 0x7fffff00")
        k("s_mul_i32 s15, s14, 18")
        k(f"v_add_u32 v5, s15, v{V_LANE}")
        k("v_lshlrev_b32 v5, 7, v5")
        k(f"v_cmp_gt_u32 vcc, 18, v{V_LANE}")
        k("s_nop 1")
        k("v_cndmask_b32 v5, v6, v5, vcc")
        k(f"s_mov_b32 s15, {3 * SLOT}")
        k(f"buffer_load_dword v7, v5, {sr(S_K, 4)}, s15 offen")
        k(f"buffer_load_dword v7, v5, {sr(S_V, 4)}, s15 offen")
        k("s_mul_i32 s15, s14, 6")
        k(f"v_add_u32 v{V_PF}, s15, v{V_LANE}")
        k(f"v_lshlrev_b32 v{V_PF}, 7, v{V_PF}")
        k(f"v_cmp_gt_u32 vcc, 6, v{V_LANE}")
        k("s_nop 1")
        k(f"v_cndmask_b32 v{V_PF}, v6, v{V_PF}, vcc")
        k(f"s_mov_b32 s{S_PF}, {12 * SLOT}")
    slow_list = []
    gen_iter(k, 0, True, slow_list)
    for pos, j3 in enumerate((1, 2, 0)):
        gen_iter(k, j3, False, slow_list, pos, True)
    k(f"s_mov_b32 s{S_CNT}, 19")
    if 'stamp' in ABL:
        k("s_memtime s[54:55]")
        k("s_memrealtime s[56:57]")
        k("s_waitcnt lgkmcnt(0)")
    k.label("L_attn_loop")
    for pos, j3 in enumerate((1, 2, 0)):
        gen_iter(k, j3, False, slow_list, pos)
    k(f"s_sub_u32 s{S_CNT}, s{S_CNT}, 1")
    k(f"s_cmp_lg_u32 s{S_CNT}, 0")
    k("s_cbranch_scc1 L_attn_loop")
    gen_iter(k, 1, False, slow_list, dk=False, dv=True, endwait=4)
    gen_iter(k, 2, False, slow_list, dk=False, dv=False, endwait=0)
    gen_iter(k, 0, False, slow_list, dk=False, dv=False, noqk=True, endwait=0)
    if 'stamp' in ABL:
        k("s_memtime s[58:59]")
        k("s_memrealtime s[60:61]")
        k("s_waitcnt lgkmcnt(0)")
    for i in range(12, 16):
        k(pv_mfma(i))
    k(f"v_mov_b32 v{V_TMP}, v{V_L}")
    k("s_nop 1")
    k(f"v_permlane32_swap_b32 v{V_TMP}, v{V_L}")
    k("s_nop 1")
    k(f"v_add_f32 v{V_L}, v{V_L}, v{V_TMP}")
    k(f"v_rcp_f32 v{V_ALPHA}, v{V_L}")
    k("s_nop 15")
    k("s_nop 3")
    for dt in range(8):
        T0 = V_S[dt & 1]
        PK = V_VF + 8 * dt
        for r in range(16):
            k(f"v_accvgpr_read_b32 v{T0 + r}, a{A_O + 16 * dt + r}")
        for r in range(16):
            k(f"v_mul_f32 v{T0 + r}, v{V_ALPHA}, v{T0 + r}")
        for i in range(8):
            k(f"v_cvt_pk_bf16_f32 v{PK + i}, v{T0 + 2 * i}, v{T0 + 2 * i + 1}")
        k("s_nop 1")
        for a, b in ((0, 2), (1, 3), (4, 6), (5, 7)):
            k(f"v_permlane32_swap_b32 v{PK + a}, v{PK + b}")
        k("s_nop 1")
        k(f"buffer_store_dwordx4 {vr(PK, 4)}, v4, {sr(S_O, 4)}, s{S_OB} offen offset:{2048 * (dt & 1)}")
        k(f"buffer_store_dwordx4 {vr(PK + 4, 4)}, v4, {sr(S_O, 4)}, s{S_OB} offen offset:{2048 * (dt & 1) + 1024}")
        if dt & 1:
            k(f"s_add_u32 s{S_OB}, s{S_OB}, 4096")
    if 'stamp' in ABL:
        k("s_waitcnt vmcnt(0)")
        k("s_memtime s[62:63]")
        k("s_memrealtime s[64:65]")
        k("s_waitcnt lgkmcnt(0)")
        k("s_cmp_lg_u32 s2, 0")
        k("s_cbranch_scc1 L_attn_done")
        k("s_cmp_lg_u32 s3, 0")
        k("s_cbranch_scc1 L_attn_done")
        make_srd(k, 68, 66, 256)
        k("v_mov_b32 v5, 0")
        for i in range(8):
            k(f"v_mov_b32 v6, s{50 + 2 * i}")
            k(f"buffer_store_dword v6, v5, s[68:71], 0 offen offset:{4 * i}")
        for i in range(3):
            k(f"v_mov_b32 v6, s{90 + 2 * i}")
            k(f"buffer_store_dword v6, v5, s[68:71], 0 offen offset:{32 + 4 * i}")
    k("s_endpgm")
    for slow, back, cur, nxt in slow_list:
        gen_slow(k, slow, back, cur, nxt)
    k.label("L_attn_done")
    k("s_endpgm")
    return k.text(), dict(vgpr=512, sgpr=96, accum=256)
```

```python
from asmlib import *
from layout import *
from k_ln import round_bf16, reg_ln_stats, reg_ln_norm_ops
import os
ABL = os.environ.get('ABL', '').split(',')


def mfma(d, a, b, c):
    return f"v_mfma_f32_32x32x16_bf16 {d}, {a}, {b}, {c}"


S_X, S_W = 16, 20
S_WOFF, S_XOFF, S_BN, S_BM, S_CNT, S_WV = 36, 37, 38, 39, 40, 41
V_L31, V_H, V_ROW, V_L16 = 2, 3, 4, 9
T0, T1, T2, T3 = 5, 6, 7, 8


def ids(k, nblk_n, per_xcd_m):
    k("s_and_b32 s14, s2, 7")
    k("s_lshr_b32 s15, s2, 3")
    magic = (1 << 32) // nblk_n + 1
    k(f"s_mov_b32 s12, {magic}")
    k(f"s_mul_hi_u32 s{S_BM}, s15, s12")
    k(f"s_mul_i32 s12, s{S_BM}, {nblk_n}")
    k(f"s_sub_u32 s{S_BN}, s15, s12")
    k(f"s_mul_i32 s14, s14, {per_xcd_m}")
    k(f"s_add_u32 s{S_BM}, s{S_BM}, s14")
    if 'badmap2' in ABL:
        k(f"s_mov_b32 s12, {magic}")
        k(f"s_mul_hi_u32 s{S_BM}, s2, s12")
        k(f"s_mul_i32 s12, s{S_BM}, {nblk_n}")
        k(f"s_sub_u32 s{S_BN}, s2, s12")
    k("v_and_b32 v1, 63, v0")
    k(f"v_and_b32 v{V_L31}, 31, v0")
    k(f"v_bfe_u32 v{V_H}, v0, 5, 1")
    k(f"v_lshlrev_b32 v{V_L16}, 4, v1")
    k(f"v_lshrrev_b32 v{T0}, 6, v0")
    k("s_nop 0")
    k(f"v_readfirstlane_b32 s3, v{T0}")
    k("s_nop 3")
    k(f"s_lshl_b32 s{S_WV}, s3, 10")


def w_read_addrs(k, RB, base, va, nset):
    k(f"v_bfe_u32 v{T0}, v1, 2, 2")
    k(f"v_and_b32 v{T1}, 3, v1")
    k(f"v_bfe_u32 v{T2}, v1, 4, 1")
    k(f"v_lshlrev_b32 v{T3}, 3, v{T1}")
    k(f"v_lshl_add_u32 v{T3}, v{T2}, 5, v{T3}")
    k(f"v_lshl_add_u32 v{T1}, v{V_H}, 3, v{T0}")
    k(f"v_mul_u32_u24 v{T1}, {RB}, v{T1}")
    k(f"v_add_u32 v{T3}, v{T3}, v{T1}")
    if base:
        k(f"v_add_u32 v{T3}, {base}, v{T3}")
    if RB == 128:
        k(f"v_lshrrev_b32 v{T0}, 1, v{T0}")
    for d in range(nset):
        k(f"v_xor_b32 v{T2}, {d}, v{T0}")
        k(f"v_lshl_add_u32 v{va + d}, v{T2}, 6, v{T3}")


def dma_src(k, B, stride, P, vbase, kind, NW=4):
    LPR, RPP = B // 16, 1024 // B
    sh = {16: 4, 8: 3}[LPR]
    k(f"v_lshrrev_b32 v{T0}, {sh}, v1")
    k(f"v_and_b32 v{T1}, {LPR - 1}, v1")
    k(f"s_mul_i32 s14, s3, {RPP}")
    k(f"v_add_u32 v{T0}, s14, v{T0}")
    for i in range(P):
        k(f"v_add_u32 v{T2}, {i * NW * RPP}, v{T0}")
        if kind == 'x':
            assert B == 128
            k(f"v_bfe_u32 v{T3}, v{T2}, 1, 3")
        elif B == 256:
            k(f"v_and_b32 v{T3}, 3, v{T2}")
            k(f"v_lshlrev_b32 v{T3}, 2, v{T3}")
        else:
            k(f"v_bfe_u32 v{T3}, v{T2}, 1, 1")
            k(f"v_lshlrev_b32 v{T3}, 2, v{T3}")
        k(f"v_xor_b32 v{T3}, v{T3}, v{T1}")
        k(f"s_mov_b32 s14, {stride}")
        k(f"v_mul_lo_u32 v{T2}, v{T2}, s14")
        k(f"v_lshl_add_u32 v{vbase + i}, v{T3}, 4, v{T2}")


def gelu_ops(k, x, t):
    k(f"v_mul_f32 v{t}, v{x}, v{x}")
    k(f"v_mov_b32 v{t + 1}, 1.0")
    k(f"v_fmac_f32 v{t + 1}, 0x3d372713, v{t}")
    k(f"v_mul_f32 v{t}, v{t + 1}, v{x}")
    k(f"v_mul_f32 v{t}, 0xc0135761, v{t}")
    k(f"v_exp_f32 v{t}, v{t}")
    k("s_nop 0")
    k(f"v_add_f32 v{t}, 1.0, v{t}")
    k(f"v_rcp_f32 v{t}, v{t}")
    k("s_nop 0")
    k(f"v_mul_f32 v{x}, v{x}, v{t}")


G1_LDS = 7 * 16384


def ln_finish(k, s1, s2, inv_n, t):
    k(f"v_mul_f32 v{s1}, {inv_n}, v{s1}")
    k(f"v_mul_f32 v{s2}, {inv_n}, v{s2}")
    k(f"v_fma_f32 v{s2}, -v{s1}, v{s1}, v{s2}")
    k(f"v_max_f32 v{s2}, 0, v{s2}")
    round_bf16(k, s1, s1)
    round_bf16(k, s2, s2)
    k(f"v_add_f32 v{s2}, 0x3727c5ac, v{s2}")
    round_bf16(k, s2, s2)
    k(f"v_sqrt_f32 v{s2}, v{s2}")
    k("s_nop 0")
    round_bf16(k, s2, s2)
    k(f"v_rcp_f32 v{s2}, v{s2}")
    k("s_nop 0")


def half_add(k, v, t):
    k(f"v_mov_b32 v{t}, v{v}")
    k("s_nop 1")
    k(f"v_permlane32_swap_b32 v{t}, v{v}")
    k("s_nop 1")
    k(f"v_add_f32 v{v}, v{v}, v{t}")


def gen_g1_fused():
    k = Kern("g1")
    V_WA, V_WA2, V_DW = 12, 16, 20
    V_NM, V_RS = 24, 26
    V_XF, V_ACC, T = 32, 144, 208
    RB, CH = 256, 16384
    k("s_cmp_ge_u32 s2, 224")
    k("s_cbranch_scc1 L_g1_done")
    k("s_load_dwordx2 s[10:11], s[0:1], 96")
    k("s_load_dwordx2 s[6:7], s[0:1], 48")
    k("s_load_dwordx2 s[4:5], s[0:1], 0")
    k("s_load_dwordx2 s[8:9], s[0:1], 88")
    ids(k, 14, 2)
    w_read_addrs(k, RB, 0, V_WA, 4)
    for d in range(4):
        k(f"v_add_u32 v{V_WA2 + d}, 0x10000, v{V_WA + d}")
    dma_src(k, RB, 3584, 4, V_DW, 'w')
    k(f"s_lshl_b32 s14, s{S_BM}, 2")
    k("s_add_u32 s44, s14, s3")
    k("s_lshl_b32 s14, s44, 5")
    k(f"v_add_u32 v{V_ROW}, s14, v{V_L31}")
    k(f"v_mul_u32_u24 v{T0}, 896, v{V_ROW}")
    k(f"v_lshl_add_u32 v{T0}, v{V_H}, 4, v{T0}")
    k("s_waitcnt lgkmcnt(0)")
    make_srd(k, S_X, 4, 2048 * 896)
    make_srd(k, S_W, 6, 448 * 3584)
    k(f"s_lshl_b32 s{S_WOFF}, s{S_BN}, 8")

    def wdma(c):
        for i in range(4):
            k(f"s_add_u32 m0, s{S_WV}, {c * CH + 4096 * i}")
            k("s_nop 0")
            k.vm(f"buffer_load_dwordx4 v{V_DW + i}, {sr(S_W, 4)}, s{S_WOFF} offen lds", ("w", c))
        k(f"s_add_u32 s{S_WOFF}, s{S_WOFF}, {64 * 3584}")

    for t in range(28):
        k.vm(f"buffer_load_dwordx4 {vr(V_XF + 4 * t, 4)}, v{T0}, {sr(S_X, 4)}, 0 offen offset:{32 * t}", ("x", t))
    for c in range(7):
        wdma(c)
    k("s_mov_b32 s48, 0x3f803f80")
    A1, A2 = T, T + 4
    for i in range(4):
        k(f"v_mov_b32 v{A1 + i}, 0")
        k(f"v_mov_b32 v{A2 + i}, 0")
    for t in range(28):
        k.vm_wait([("x", t)])
        for i in range(4):
            r = V_XF + 4 * t + i
            k(f"v_dot2_f32_bf16 v{A1 + i}, v{r}, s48, v{A1 + i}")
            k(f"v_dot2_f32_bf16 v{A2 + i}, v{r}, v{r}, v{A2 + i}")
    for A in (A1, A2):
        k(f"v_add_f32 v{A}, v{A}, v{A + 1}")
        k(f"v_add_f32 v{A + 2}, v{A + 2}, v{A + 3}")
        k(f"v_add_f32 v{A}, v{A}, v{A + 2}")
        half_add(k, A, T + 8)
    ln_finish(k, A1, A2, "0x3b124925", T + 8)
    k(f"v_sub_f32 v{V_NM}, 0, v{A1}")
    k(f"v_mov_b32 v{V_RS}, v{A2}")

    def norm_ops(c):
        ops = []
        for i in range(16):
            r = V_XF + 16 * c + i
            t = T + 4 * (i & 1)
            ops += [f"v_lshlrev_b32 v{t}, 16, v{r}", f"v_and_b32 v{t + 1}, 0xffff0000, v{r}",
                    f"v_pk_add_f32 {vr(t, 2)}, {vr(t, 2)}, {vr(V_NM, 2)} op_sel_hi:[1,0]",
                    f"v_cvt_pk_bf16_f32 v{t + 2}, v{t}, v{t + 1}",
                    f"v_lshlrev_b32 v{t}, 16, v{t + 2}", f"v_and_b32 v{t + 1}, 0xffff0000, v{t + 2}",
                    f"v_pk_mul_f32 {vr(t, 2)}, {vr(t, 2)}, {vr(V_RS, 2)} op_sel_hi:[1,0]",
                    f"v_cvt_pk_bf16_f32 v{r}, v{t}, v{t + 1}"]
        return ops

    def mf(c):
        out = []
        for ks in range(4):
            for nt in range(4):
                i = ks * 4 + nt
                o = vr(V_ACC + 16 * nt, 16)
                c_ = "0" if (c == 0 and ks == 0) else o
                out.append(mfma(o, ar(64 * (c & 1) + 4 * i, 4), vr(V_XF + 4 * (4 * c + ks), 4), c_))
        return out

    for c in range(8):
        m = mf(c - 1) if c >= 1 else []
        if c == 7:
            k("s_waitcnt lgkmcnt(0)")
            k("s_nop 1")
            for x in m:
                k(x)
            break
        k.vm_wait([("w", c)])
        k("s_waitcnt lgkmcnt(0)")
        k("s_barrier")
        no = norm_ops(c)
        for ks in range(4):
            for nt in range(4):
                i = ks * 4 + nt
                for u in range(2):
                    off = c * CH + (16 * ks + 4 * u) * RB
                    wa = V_WA
                    if off >= 65536:
                        off -= 65536
                        wa = V_WA2
                    k(f"ds_read_b64_tr_b16 {ar(64 * (c & 1) + 4 * i + 2 * u, 2)}, v{wa + nt} offset:{off}")
                if m:
                    k(m[i])
                for o in no[8 * i: 8 * i + 8]:
                    k(o)
    k(f"s_cmp_lg_u32 s{S_BN}, 0")
    k("s_cbranch_scc1 L_g1_noxn")
    make_srd(k, 24, 10, 2048 * 896, add_lo=WS_XNF)
    k("s_mul_i32 s15, s44, 28672")
    for t in range(28):
        k(f"buffer_store_dwordx4 {vr(V_XF + 4 * t, 4)}, v{V_L16}, s[24:27], s15 offen offset:{1024 * (t & 3)}")
        if t & 3 == 3:
            k("s_add_u32 s15, s15, 4096")
    k.label("L_g1_noxn")
    k("s_nop 15")
    k("s_nop 3")
    for r in range(64):
        round_bf16(k, V_ACC + r, V_ACC + r)
        gelu_ops(k, V_ACC + r, T + 4 * (r & 1))
        round_bf16(k, V_ACC + r, V_ACC + r)
    k(f"s_cmp_ge_u32 s{S_BN}, 7")
    k("s_cbranch_scc1 L_g1_z2")
    make_srd(k, 24, 10, 2048 * 1792, add_lo=WS_Z1A)
    k("s_mul_i32 s14, s44, 57344")
    k(f"s_lshl_b32 s15, s{S_BN}, 13")
    k("s_add_u32 s14, s14, s15")
    k(f"v_lshlrev_b32 v{T0}, 3, v1")
    for nt in range(4):
        for q in range(4):
            r0 = V_ACC + 16 * nt + 4 * q
            p = V_XF + 2 * (4 * nt + q)
            k(f"v_cvt_pk_bf16_f32 v{p}, v{r0}, v{r0 + 1}")
            k(f"v_cvt_pk_bf16_f32 v{p + 1}, v{r0 + 2}, v{r0 + 3}")
            k(f"buffer_store_dwordx2 {vr(p, 2)}, v{T0}, s[24:27], s14 offen offset:{2048 * (nt & 1) + 512 * q}")
        if nt & 1:
            k("s_add_u32 s14, s14, 4096")
    k("s_endpgm")
    k.label("L_g1_z2")
    S1, S2 = T, T + 1
    k(f"v_mov_b32 v{S1}, 0")
    k(f"v_mov_b32 v{S2}, 0")
    k(f"v_mov_b32 v{T + 2}, 0")
    k(f"v_mov_b32 v{T + 3}, 0")
    for r in range(0, 64, 2):
        k(f"v_add_f32 v{S1}, v{S1}, v{V_ACC + r}")
        k(f"v_fmac_f32 v{S2}, v{V_ACC + r}, v{V_ACC + r}")
        k(f"v_add_f32 v{T + 2}, v{T + 2}, v{V_ACC + r + 1}")
        k(f"v_fmac_f32 v{T + 3}, v{V_ACC + r + 1}, v{V_ACC + r + 1}")
    k(f"v_add_f32 v{S1}, v{S1}, v{T + 2}")
    k(f"v_add_f32 v{S2}, v{S2}, v{T + 3}")
    half_add(k, S1, T + 8)
    half_add(k, S2, T + 8)
    make_srd(k, 28, 10, 2048 * 64, add_lo=WS_ST)
    make_srd(k, 32, 8, 256)
    k(f"s_sub_u32 s15, s{S_BN}, 7")
    k("s_lshl_b32 s14, s15, 3")
    k(f"v_lshlrev_b32 v{T1}, 6, v{V_ROW}")
    k(f"buffer_store_dwordx2 {vr(S1, 2)}, v{T1}, s[28:31], s14 offen sc1")
    k("s_waitcnt vmcnt(0)")
    k("s_barrier")
    k("s_cmp_lg_u32 s3, 0")
    k("s_cbranch_scc1 L_g1_wait")
    k(f"s_lshl_b32 s14, s{S_BM}, 2")
    k(f"v_mov_b32 v{T2}, s14")
    k(f"v_mov_b32 v{T3}, 1")
    k("s_mov_b64 s[52:53], exec")
    k("s_mov_b64 exec, 1")
    k(f"buffer_atomic_add v{T3}, v{T2}, s[32:35], 0 offen sc1")
    k("s_mov_b64 exec, s[52:53]")
    k("s_waitcnt vmcnt(0)")
    k("s_mov_b32 s49, 0x200000")
    k.label("L_g1_poll")
    k(f"buffer_load_dword v{T3}, v{T2}, s[32:35], 0 offen sc1")
    k("s_waitcnt vmcnt(0)")
    k(f"v_readfirstlane_b32 s14, v{T3}")
    k("s_sub_u32 s49, s49, 1")
    k("s_cmp_eq_u32 s49, 0")
    k("s_cbranch_scc1 L_g1_wait")
    k("s_cmp_ge_u32 s14, 7")
    k("s_cbranch_scc1 L_g1_wait")
    k("s_sleep 1")
    k("s_branch L_g1_poll")
    k.label("L_g1_wait")
    k("s_barrier")
    PS = V_XF
    for j in range(7):
        k(f"buffer_load_dwordx2 {vr(PS + 2 * j, 2)}, v{T1}, s[28:31], 0 offen offset:{8 * j} sc1")
    make_srd(k, 24, 10, 2048 * 1792, add_lo=WS_Z2)
    k("s_lshl_b32 s15, s15, 8")
    k(f"v_mul_u32_u24 v{T0}, 1792, v{V_ROW}")
    k(f"v_add_u32 v{T0}, s15, v{T0}")
    k(f"v_lshl_add_u32 v{T0}, v{V_H}, 3, v{T0}")
    k("s_waitcnt vmcnt(0)")
    k(f"v_add_f32 v{S1}, v{PS}, v{PS + 2}")
    k(f"v_add_f32 v{S2}, v{PS + 1}, v{PS + 3}")
    for j in range(2, 7):
        k(f"v_add_f32 v{S1}, v{S1}, v{PS + 2 * j}")
        k(f"v_add_f32 v{S2}, v{S2}, v{PS + 2 * j + 1}")
    ln_finish(k, S1, S2, "0x3a924925", T + 8)
    for nt in range(4):
        for q in range(4):
            r0 = V_ACC + 16 * nt + 4 * q
            p = V_XF + 16 + 2 * (4 * nt + q)
            for j in range(4):
                k(f"v_sub_f32 v{r0 + j}, v{r0 + j}, v{S1}")
                round_bf16(k, r0 + j, r0 + j)
                k(f"v_mul_f32 v{r0 + j}, v{r0 + j}, v{S2}")
            k(f"v_cvt_pk_bf16_f32 v{p}, v{r0}, v{r0 + 1}")
            k(f"v_cvt_pk_bf16_f32 v{p + 1}, v{r0 + 2}, v{r0 + 3}")
            k(f"buffer_store_dwordx2 {vr(p, 2)}, v{T0}, s[24:27], 0 offen offset:{64 * nt + 16 * q}")
    k.label("L_g1_done")
    k("s_endpgm")
    return k.text(), dict(vgpr=256 + 128, sgpr=64, accum=256)


def gen_g1(k=None, sync=False, waitxn=False):
    own = k is None
    if own:
        k = Kern("g1")
    k.vm_q = []
    k.lds_q = []
    V_NM, V_RS = 24, 26
    V_WA, V_WA2, V_DW = 12, 16, 20
    V_XF, V_ACC, T = 32, 144, 208
    RB, CH = 256, 16384
    if own:
        k("s_cmp_ge_u32 s2, 224")
        k("s_cbranch_scc1 L_g1_done")
    k("s_load_dwordx2 s[10:11], s[0:1], 96")
    k("s_load_dwordx2 s[6:7], s[0:1], 48")
    k("s_load_dwordx2 s[8:9], s[0:1], 88")
    SC = " sc1" if sync else ""
    ids(k, 14, 2)
    w_read_addrs(k, RB, 0, V_WA, 4)
    for d in range(4):
        k(f"v_add_u32 v{V_WA2 + d}, 0x10000, v{V_WA + d}")
    dma_src(k, RB, 3584, 4, V_DW, 'w')
    k("s_waitcnt lgkmcnt(0)")
    make_srd(k, S_X, 10, 2048 * 896, add_lo=WS_XNF)
    make_srd(k, S_W, 6, 448 * 3584)
    k(f"s_lshl_b32 s{S_WOFF}, s{S_BN}, 8")
    k(f"s_lshl_b32 s14, s{S_BM}, 2")
    k("s_add_u32 s44, s14, s3")
    k("s_mul_i32 s15, s44, 28672")

    def wdma(c):
        for i in range(4):
            k(f"s_add_u32 m0, s{S_WV}, {c * CH + 4096 * i}")
            k("s_nop 0")
            k.vm(f"buffer_load_dwordx4 v{V_DW + i}, {sr(S_W, 4)}, s{S_WOFF} offen lds", ("w", c))
        k(f"s_add_u32 s{S_WOFF}, s{S_WOFF}, {64 * 3584}")

    if waitxn:
        for c in range(7):
            wdma(c)
        k(f"s_add_u32 s45, s{S_BM}, 32")
        k("s_mov_b32 s60, s15")
        wait_for(k, "s45", 4, "g1x", False)
        k.vm_q = []
        k("s_mov_b32 s15, s60")
        for c in range(7):
            for t in range(4 * c, 4 * c + 4):
                k.vm(f"buffer_load_dwordx4 {vr(V_XF + 4 * t, 4)}, v{V_L16}, {sr(S_X, 4)}, s15 offen offset:{1024 * (t & 3)} sc1", ("x", c))
            k("s_add_u32 s15, s15, 4096")
    else:
      for c in range(7):
        wdma(c)
        for t in range(4 * c, 4 * c + 4):
            k.vm(f"buffer_load_dwordx4 {vr(V_XF + 4 * t, 4)}, v{V_L16}, {sr(S_X, 4)}, s15 offen offset:{1024 * (t & 3)}", ("x", c))
        k("s_add_u32 s15, s15, 4096")

    def mf(c):
        out = []
        for ks in range(4):
            for nt in range(4):
                i = ks * 4 + nt
                o = vr(V_ACC + 16 * nt, 16)
                c_ = "0" if (c == 0 and ks == 0) else o
                out.append(mfma(o, ar(64 * (c & 1) + 4 * i, 4), vr(V_XF + 4 * (4 * c + ks), 4), c_))
        return out

    for c in range(8):
        m = mf(c - 1) if c >= 1 else []
        if c == 7:
            k("s_waitcnt lgkmcnt(0)")
            k("s_nop 1")
            for x in m:
                k(x)
            break
        if waitxn and c == 0:
            k("s_waitcnt vmcnt(24)")
            k.vm_q = k.vm_q[4:]
        k.vm_wait([("w", c), ("x", c)])
        k("s_waitcnt lgkmcnt(0)")
        k("s_barrier")
        no = []
        for ks in range(4):
            for nt in range(4):
                i = ks * 4 + nt
                for u in range(2):
                    off = c * CH + (16 * ks + 4 * u) * RB
                    wa = V_WA
                    if off >= 65536:
                        off -= 65536
                        wa = V_WA2
                    k(f"ds_read_b64_tr_b16 {ar(64 * (c & 1) + 4 * i + 2 * u, 2)}, v{wa + nt} offset:{off}")
                if m:
                    k(m[i])
                for o in no[8 * i: 8 * i + 8]:
                    k(o)
    k("s_nop 15")
    k("s_nop 3")
    for r in range(0, 64, 2):
        round_bf16(k, V_ACC + r, V_ACC + r)
        round_bf16(k, V_ACC + r + 1, V_ACC + r + 1)
        gelu2_ops(k, V_ACC + r, V_ACC + r + 1, T)
    k(f"s_cmp_ge_u32 s{S_BN}, 7")
    k("s_cbranch_scc1 L_g1_z2")
    make_srd(k, 24, 10, 2048 * 1792, add_lo=WS_Z1A)
    k("s_mul_i32 s14, s44, 57344")
    k(f"s_lshl_b32 s15, s{S_BN}, 13")
    k("s_add_u32 s14, s14, s15")
    k(f"v_lshlrev_b32 v{T0}, 3, v1")
    for nt in range(4):
        for q in range(4):
            r0 = V_ACC + 16 * nt + 4 * q
            p = V_XF + 2 * (4 * nt + q)
            k(f"v_cvt_pk_bf16_f32 v{p}, v{r0}, v{r0 + 1}")
            k(f"v_cvt_pk_bf16_f32 v{p + 1}, v{r0 + 2}, v{r0 + 3}")
            k(f"buffer_store_dwordx2 {vr(p, 2)}, v{T0}, s[24:27], s14 offen offset:{2048 * (nt & 1) + 512 * q}{SC}")
        if nt & 1:
            k("s_add_u32 s14, s14, 4096")
    if sync:
        signal(k, f"s{S_BM}", "g1a")
    k("s_endpgm")
    k.label("L_g1_z2")
    make_srd(k, 24, 10, 2048 * 1792, add_lo=WS_Z2)
    k(f"s_sub_u32 s15, s{S_BN}, 7")
    k("s_lshl_b32 s15, s15, 8")
    k("s_lshl_b32 s14, s44, 5")
    k(f"v_add_u32 v{V_ROW}, s14, v{V_L31}")
    k(f"v_mul_u32_u24 v{T0}, 1792, v{V_ROW}")
    k(f"v_add_u32 v{T0}, s15, v{T0}")
    k(f"v_lshl_add_u32 v{T0}, v{V_H}, 4, v{T0}")
    for nt in range(4):
        PK = V_XF + 8 * nt
        for i in range(8):
            k(f"v_cvt_pk_bf16_f32 v{PK + i}, v{V_ACC + 16 * nt + 2 * i}, v{V_ACC + 16 * nt + 2 * i + 1}")
        k("s_nop 1")
        for a, b in ((0, 2), (1, 3), (4, 6), (5, 7)):
            k(f"v_permlane32_swap_b32 v{PK + a}, v{PK + b}")
        k("s_nop 1")
        k(f"buffer_store_dwordx4 {vr(PK, 4)}, v{T0}, s[24:27], 0 offen offset:{64 * nt}{SC}")
        k(f"buffer_store_dwordx4 {vr(PK + 4, 4)}, v{T0}, s[24:27], 0 offen offset:{64 * nt + 32}{SC}")
    if sync:
        signal(k, f"s{S_BM}", "g1b")
    k.label("L_g1_done")
    k("s_endpgm")
    return k.text(), dict(vgpr=256 + 128, sgpr=64, accum=256)


def gelu2_ops(k, x, y, t):
    for (a, u) in ((x, t), (y, t + 2)):
        k(f"v_mul_f32 v{u}, v{a}, v{a}")
        k(f"v_mov_b32 v{u + 1}, 1.0")
    for (a, u) in ((x, t), (y, t + 2)):
        k(f"v_fmac_f32 v{u + 1}, 0x3d372713, v{u}")
    for (a, u) in ((x, t), (y, t + 2)):
        k(f"v_mul_f32 v{u}, v{u + 1}, v{a}")
    for (a, u) in ((x, t), (y, t + 2)):
        k(f"v_mul_f32 v{u}, 0xc0135761, v{u}")
    for (a, u) in ((x, t), (y, t + 2)):
        k(f"v_exp_f32 v{u}, v{u}")
    for (a, u) in ((x, t), (y, t + 2)):
        k(f"v_add_f32 v{u}, 1.0, v{u}")
    for (a, u) in ((x, t), (y, t + 2)):
        k(f"v_rcp_f32 v{u}, v{u}")
    for (a, u) in ((x, t), (y, t + 2)):
        k(f"v_mul_f32 v{a}, v{a}, v{u}")


G2_R = 6
G2_CH = 16384 + 8192
G2_LDS = G2_R * G2_CH


def gen_g2():
    k = Kern("g2")
    R, CH, XCH, RB, XB = G2_R, G2_CH, 16384, 128, 128
    V_WA, V_XA, V_DW, V_DX, V_TA = 12, 14, 16, 18, 20
    V_XF, V_WF, V_ACC, T = 32, 48, 80, 112
    P = 3
    V_B = 24
    k("s_cmp_ge_u32 s2, 224")
    k("s_cbranch_scc1 L_g2_done")
    k("s_load_dwordx2 s[10:11], s[0:1], 96")
    k("s_load_dwordx2 s[4:5], s[0:1], 56")
    k("s_load_dwordx2 s[8:9], s[0:1], 64")
    ids(k, 14, 2)
    k("s_and_b32 s46, s3, 3")
    k("s_lshr_b32 s47, s3, 2")
    w_read_addrs(k, RB, XCH, V_WA, 2)
    k("s_lshl_b32 s14, s47, 12")
    for d in range(2):
        k(f"v_add_u32 v{V_WA + d}, s14, v{V_WA + d}")
    k("s_lshl_b32 s14, s46, 5")
    k(f"v_add_u32 v{T0}, s14, v{V_L31}")
    k(f"v_lshlrev_b32 v{T1}, 7, v{T0}")
    k(f"v_bfe_u32 v{T2}, v{T0}, 1, 3")
    k("s_lshl_b32 s14, s47, 2")
    for t in range(2):
        k(f"v_add_u32 v{T3}, s14, v{V_H}")
        if t:
            k(f"v_add_u32 v{T3}, 2, v{T3}")
        k(f"v_xor_b32 v{T3}, v{T3}, v{T2}")
        k(f"v_lshl_add_u32 v{V_XA + t}, v{T3}, 4, v{T1}")
    dma_src(k, XB, 4096, 2, V_DX, 'x', 8)
    dma_src(k, RB, 1792, 1, V_DW, 'w', 8)
    k("s_waitcnt lgkmcnt(0)")
    make_srd(k, S_X, 4, 2048 * 4096)
    make_srd(k, S_W, 10, 2048 * 1792, add_lo=WS_Z2)
    k(f"s_lshl_b32 s{S_XOFF}, s{S_BM}, 19")
    k(f"s_lshl_b32 s{S_WOFF}, s{S_BN}, 7")

    def dma(slot):
        if 'gnodma' in ABL:
            return
        for i in range(2):
            k(f"s_add_u32 m0, s{S_WV}, {slot * CH + 8192 * i}")
            k("s_nop 0")
            k(f"buffer_load_dwordx4 v{V_DX + i}, {sr(S_X, 4)}, s{S_XOFF} offen lds")
        if 'fixx' not in ABL: k(f"s_add_u32 s{S_XOFF}, s{S_XOFF}, 128")
        k(f"s_add_u32 m0, s{S_WV}, {slot * CH + XCH}")
        k("s_nop 0")
        k(f"buffer_load_dwordx4 v{V_DW}, {sr(S_W, 4)}, s{S_WOFF} offen lds")
        if 'fixw' not in ABL: k(f"s_add_u32 s{S_WOFF}, s{S_WOFF}, {64 * 1792}")

    def mf(buf, first):
        out = []
        for ks in range(2):
            for nt in range(2):
                i = ks * 2 + nt
                o = vr(V_ACC + 16 * nt, 16)
                c_ = "0" if (first and ks == 0) else o
                out.append(mfma(o, vr(V_WF + 16 * buf + 4 * i, 4), vr(V_XF + 8 * buf + 4 * ks, 4), c_))
        return out

    def step(slot, buf, prev, wait, pre=True):
        k(f"s_waitcnt vmcnt({wait}) lgkmcnt(0)")
        k("s_barrier")
        base = slot * CH
        xa, wa, boff = V_XA, V_WA, base
        if base + CH > 65536:
            boff = 0
            for t in range(2):
                k(f"v_add_u32 v{V_TA + t}, {base}, v{V_XA + t}")
            for t in range(2):
                k(f"v_add_u32 v{V_TA + 2 + t}, {base}, v{V_WA + t}")
            xa, wa = V_TA, V_TA + 2
        for ks in range(2):
            k(f"ds_read_b128 {vr(V_XF + 8 * buf + 4 * ks, 4)}, v{xa + ks} offset:{boff}")
            for nt in range(2):
                i = ks * 2 + nt
                for u in range(2):
                    off = boff + (16 * ks + 4 * u) * RB
                    k(f"ds_read_b64_tr_b16 {vr(V_WF + 16 * buf + 4 * i + 2 * u, 2)}, v{wa + nt} offset:{off}")
                if prev:
                    k(prev[i])
        if pre:
            dma((slot + R - 1) % R)

    for s_ in range(R - 1):
        dma(s_)
    W0 = (R - 2) * P
    step(0, 0, None, W0)
    step(1, 1, mf(0, True), W0)
    k(f"s_mov_b32 s{S_CNT}, 4")
    k.label("L_g2_loop")
    for j in range(6):
        c = 2 + j
        step(c % R, c & 1, mf((c - 1) & 1, False), W0)
    k(f"s_sub_u32 s{S_CNT}, s{S_CNT}, 1")
    k(f"s_cmp_lg_u32 s{S_CNT}, 0")
    k("s_cbranch_scc1 L_g2_loop")
    for c in range(26, 32):
        step(c % R, c & 1, mf((c - 1) & 1, False), (min(c + R - 2, 31) - c) * P, c + R - 1 <= 31)
    k("s_waitcnt lgkmcnt(0)")
    for x in mf(1, False):
        k(x)
    k("s_waitcnt vmcnt(0)")
    k("s_barrier")
    make_srd(k, 24, 10, 2048 * 1792, add_lo=WS_Z1A)
    make_srd(k, 28, 10, 2048 * 1792, add_lo=WS_UF)
    make_srd(k, 32, 8, 4096)
    k(f"s_lshl_b32 s14, s{S_BM}, 2")
    k("s_add_u32 s44, s14, s46")
    k("s_lshl_b32 s14, s44, 5")
    k(f"v_add_u32 v{V_ROW}, s14, v{V_L31}")
    k(f"v_lshlrev_b32 v{T1}, 1, v{V_ROW}")
    k(f"buffer_load_ushort v{V_B}, v{T1}, s[32:35], 0 offen")
    k("s_mul_i32 s14, s44, 57344")
    k(f"s_lshl_b32 s15, s{S_BN}, 12")
    k("s_add_u32 s14, s14, s15")
    k("s_lshl_b32 s15, s47, 11")
    k("s_add_u32 s14, s14, s15")
    k(f"v_lshlrev_b32 v{T0}, 3, v1")
    Z = V_WF
    for q in range(4):
        k(f"buffer_load_dwordx2 {vr(Z + 2 * q, 2)}, v{T0}, s[24:27], s14 offen offset:{512 * q}")
    k("s_lshl_b32 s15, s3, 12")
    k(f"v_add_u32 v{T1}, s15, v{V_L16}")
    k("s_xor_b32 s15, s3, 4")
    k("s_lshl_b32 s15, s15, 12")
    k(f"v_add_u32 v{T3}, s15, v{V_L16}")
    k("s_nop 7")
    k("s_cmp_eq_u32 s47, 0")
    k("s_cbranch_scc1 L_g2_kh0")
    for q in range(4):
        k(f"ds_write_b128 v{T1}, {vr(V_ACC + 4 * q, 4)} offset:{1024 * q}")
    for r in range(16):
        k(f"v_mov_b32 v{V_ACC + r}, v{V_ACC + 16 + r}")
    k("s_branch L_g2_join")
    k.label("L_g2_kh0")
    for q in range(4):
        k(f"ds_write_b128 v{T1}, {vr(V_ACC + 16 + 4 * q, 4)} offset:{1024 * q}")
    k.label("L_g2_join")
    k("s_waitcnt lgkmcnt(0)")
    k("s_barrier")
    for q in range(4):
        k(f"ds_read_b128 {vr(V_ACC + 16 + 4 * q, 4)}, v{T3} offset:{1024 * q}")
    k("s_waitcnt vmcnt(0) lgkmcnt(0)")
    k(f"v_lshlrev_b32 v{T2}, 16, v{V_B}")
    PK = V_XF
    for q in range(4):
        r0 = V_ACC + 4 * q
        z = Z + 2 * q
        for j in range(4):
            k(f"v_add_f32 v{r0 + j}, v{r0 + j}, v{r0 + 16 + j}")
            round_bf16(k, r0 + j, r0 + j)
            k(f"v_add_f32 v{r0 + j}, v{r0 + j}, v{T2}")
            round_bf16(k, r0 + j, r0 + j)
            if j & 1:
                k(f"v_and_b32 v{T}, 0xffff0000, v{z + (j >> 1)}")
            else:
                k(f"v_lshlrev_b32 v{T}, 16, v{z + (j >> 1)}")
            k(f"v_mul_f32 v{r0 + j}, v{r0 + j}, v{T}")
        k(f"v_cvt_pk_bf16_f32 v{PK + 2 * q}, v{r0}, v{r0 + 1}")
        k(f"v_cvt_pk_bf16_f32 v{PK + 2 * q + 1}, v{r0 + 2}, v{r0 + 3}")
    k("s_nop 1")
    for a, b in ((0, 2), (1, 3), (4, 6), (5, 7)):
        k(f"v_permlane32_swap_b32 v{PK + a}, v{PK + b}")
    k("s_nop 1")
    k(f"buffer_store_dwordx4 {vr(PK, 4)}, v{V_L16}, s[28:31], s14 offen")
    k(f"buffer_store_dwordx4 {vr(PK + 4, 4)}, v{V_L16}, s[28:31], s14 offen offset:1024")
    k.label("L_g2_done")
    k("s_endpgm")
    return k.text(), dict(vgpr=128, sgpr=64, accum=128)


FIN_R = 6
FIN_LDS = 131072


def gen_fin():
    k = Kern("fin")
    R, CH, RB = FIN_R, 16384, 128
    V_WA, V_DW, V_WB = 12, 14, 16
    V_XF, V_WF, V_ACC, T = 24, 72, 104, 168
    P = 4
    k("s_cmp_ge_u32 s2, 224")
    k("s_cbranch_scc1 L_fin_done")
    k("s_load_dwordx2 s[10:11], s[0:1], 96")
    k("s_load_dwordx2 s[4:5], s[0:1], 32")
    k("s_load_dwordx2 s[6:7], s[0:1], 72")
    k("s_load_dwordx2 s[8:9], s[0:1], 0")
    k("s_load_dwordx2 s[50:51], s[0:1], 80")
    ids(k, 7, 4)
    k("s_and_b32 s46, s3, 1")
    k("s_lshr_b32 s47, s3, 1")
    k("s_lshl_b32 s14, s47, 12")
    w_read_addrs(k, RB, 0, V_WA, 2)
    for d in range(2):
        k(f"v_add_u32 v{V_WA + d}, s14, v{V_WA + d}")
        k(f"v_add_u32 v{V_WB + d}, 0x10000, v{V_WA + d}")
    dma_src(k, RB, 896, 2, V_DW, 'w', 8)
    k(f"s_lshl_b32 s14, s{S_BM}, 1")
    k("s_add_u32 s44, s14, s46")
    k("s_waitcnt lgkmcnt(0)")

    S_X2, S_W2, S_XOFF2, S_WOFF2 = 24, 28, 52, 53
    make_srd(k, S_X, 10, 2048 * 1792, add_lo=WS_UF)
    make_srd(k, S_W, 6, 896 * 896)
    make_srd(k, S_X2, 10, 2048 * 8192, add_lo=WS_OF)
    make_srd(k, S_W2, 4, 4096 * 896)
    k("s_lshl_b32 s14, s47, 11")
    k(f"s_mul_i32 s{S_XOFF}, s44, {56 * 1024}")
    k(f"s_add_u32 s{S_XOFF}, s{S_XOFF}, s14")
    k(f"s_lshl_b32 s{S_XOFF2}, s44, 18")
    k(f"s_add_u32 s{S_XOFF2}, s{S_XOFF2}, s14")
    k(f"s_lshl_b32 s{S_WOFF}, s{S_BN}, 7")
    k(f"s_lshl_b32 s{S_WOFF2}, s{S_BN}, 7")
    NT_CH, NCH = 7, 39

    def dma_x(c):
        slot = c % R
        sx, xo = (S_X, S_XOFF) if c < NT_CH else (S_X2, S_XOFF2)
        for i in range(2):
            k(f"buffer_load_dwordx4 {vr(V_XF + 8 * slot + 4 * i, 4)}, v{V_L16}, {sr(sx, 4)}, s{xo} offen offset:{1024 * i}")
        k(f"s_add_u32 s{xo}, s{xo}, 8192")

    def dma_w(c):
        slot = c % R
        sw, wo = (S_W, S_WOFF) if c < NT_CH else (S_W2, S_WOFF2)
        for i in range(2):
            k(f"s_add_u32 m0, s{S_WV}, {slot * CH + 8192 * i}")
            k("s_nop 0")
            k(f"buffer_load_dwordx4 v{V_DW + i}, {sr(sw, 4)}, s{wo} offen lds")
        k(f"s_add_u32 s{wo}, s{wo}, {128 * 896}")

    FV = os.environ.get('FINV', '0')

    def dma(c):
        if FV == '0':
            dma_x(c)
            dma_w(c)
        else:
            dma_w(c)
            dma_x(c)

    def mf(c):
        slot, buf = c % R, c & 1
        acc = V_ACC + 32 if c < NT_CH else V_ACC
        first = c in (0, NT_CH)
        out = []
        for ks in range(2):
            for nt in range(2):
                i = ks * 2 + nt
                o = vr(acc + 16 * nt, 16)
                c_ = "0" if (first and ks == 0) else o
                out.append(mfma(o, vr(V_WF + 16 * buf + 4 * i, 4), vr(V_XF + 8 * slot + 4 * ks, 4), c_))
        return out

    def step(c, tail=False):
        slot, buf = c % R, c & 1
        prev = mf(c - 1) if c else None
        k(f"s_waitcnt vmcnt({((min(c + R - 2, NCH - 1) - c) if tail else (R - 2)) * P}) lgkmcnt(0)")
        k("s_barrier")
        if FV == '1':
            dma_w(c + R - 1)
        for ks in range(2):
            for nt in range(2):
                i = ks * 2 + nt
                for u in range(2):
                    off = slot * CH + (16 * ks + 4 * u) * RB
                    wa = V_WA
                    if off >= 65536:
                        off -= 65536
                        wa = V_WB
                    k(f"ds_read_b64_tr_b16 {vr(V_WF + 16 * buf + 4 * i + 2 * u, 2)}, v{wa + nt} offset:{off}")
                if prev:
                    k(prev[i])
                if FV == '2' and i == 1:
                    dma_w(c + R - 1)
        if tail and c + R - 1 > NCH - 1:
            return
        if FV == '0':
            dma(c + R - 1)
        else:
            dma_x(c + R - 1)

    for c in range(R - 1):
        dma(c)
    for c in range(9):
        step(c)
    k(f"s_mov_b32 s{S_CNT}, 4")
    k.label("L_fin_loop")
    for c in range(9, 15):
        step(c)
    k(f"s_sub_u32 s{S_CNT}, s{S_CNT}, 1")
    k(f"s_cmp_lg_u32 s{S_CNT}, 0")
    k("s_cbranch_scc1 L_fin_loop")
    for c in range(33, 39):
        step(c, True)
    k("s_waitcnt lgkmcnt(0)")
    for x in mf(38):
        k(x)
    k("s_waitcnt vmcnt(0)")
    k("s_barrier")
    make_srd(k, 24, 8, 2048 * 896)
    make_srd(k, 28, 50, 2048 * 896)
    k("s_lshl_b32 s14, s44, 5")
    k(f"v_add_u32 v{V_ROW}, s14, v{V_L31}")
    k("s_and_b32 s14, s47, 1")
    k("s_lshl_b32 s14, s14, 6")
    k("s_lshr_b32 s15, s47, 1")
    k("s_lshl_b32 s15, s15, 5")
    k("s_add_u32 s14, s14, s15")
    k(f"s_lshl_b32 s15, s{S_BN}, 7")
    k("s_add_u32 s14, s14, s15")
    k(f"v_mul_u32_u24 v{T0}, 896, v{V_ROW}")
    k(f"v_add_u32 v{T0}, s14, v{T0}")
    k(f"v_lshl_add_u32 v{T0}, v{V_H}, 3, v{T0}")
    XR = V_WF
    for q in range(2):
        k(f"buffer_load_dwordx2 {vr(XR + 2 * q, 2)}, v{T0}, s[24:27], 0 offen offset:{16 * q}")
    k("s_lshl_b32 s14, s3, 14")
    k(f"v_add_u32 v{T1}, s14, v{V_L16}")
    for ph in range(2):
        for nt in range(2):
            for q in range(4):
                k(f"ds_write_b128 v{T1}, {vr(V_ACC + 32 * ph + 16 * nt + 4 * q, 4)} offset:{8192 * ph + 4096 * nt + 1024 * q}")
    k("s_lshl_b32 s14, s46, 14")
    k("s_and_b32 s15, s47, 1")
    k("s_lshl_b32 s15, s15, 12")
    k("s_add_u32 s14, s14, s15")
    k("s_lshr_b32 s15, s47, 1")
    k("s_lshl_b32 s15, s15, 11")
    k("s_add_u32 s14, s14, s15")
    k(f"v_add_u32 v{T1}, s14, v{V_L16}")
    k(f"v_add_u32 v{T2}, 0x10000, v{T1}")
    k("s_waitcnt lgkmcnt(0)")
    k("s_barrier")
    for ph in range(2):
        for j in range(4):
            for q in range(2):
                k(f"ds_read_b128 {vr(V_ACC + 32 * ph + 8 * j + 4 * q, 4)}, v{T1 if j < 2 else T2} offset:{32768 * (j & 1) + 8192 * ph + 1024 * q}")
    k("s_waitcnt vmcnt(0) lgkmcnt(0)")
    S, TT = V_ACC, V_ACC + 32
    for b in (S, TT):
        for r in range(8):
            k(f"v_add_f32 v{b + r}, v{b + r}, v{b + 8 + r}")
            k(f"v_add_f32 v{b + 16 + r}, v{b + 16 + r}, v{b + 24 + r}")
            k(f"v_add_f32 v{b + r}, v{b + r}, v{b + 16 + r}")
    for q in range(2):
        for j in range(4):
            r = 4 * q + j
            round_bf16(k, S + r, S + r)
            round_bf16(k, TT + r, TT + r)
            k(f"v_mul_f32 v{T}, 0xbfb8aa3b, v{TT + r}")
            k(f"v_exp_f32 v{T}, v{T}")
            k("s_nop 0")
            k(f"v_add_f32 v{T}, 1.0, v{T}")
            k(f"v_rcp_f32 v{T}, v{T}")
            k("s_nop 0")
            k(f"v_mul_f32 v{TT + r}, v{TT + r}, v{T}")
            round_bf16(k, TT + r, TT + r)
            k(f"v_mul_f32 v{S + r}, v{S + r}, v{TT + r}")
            round_bf16(k, S + r, S + r)
            if j & 1:
                k(f"v_and_b32 v{T}, 0xffff0000, v{XR + 2 * q + (j >> 1)}")
            else:
                k(f"v_lshlrev_b32 v{T}, 16, v{XR + 2 * q + (j >> 1)}")
            k(f"v_add_f32 v{S + r}, v{S + r}, v{T}")
        k(f"v_cvt_pk_bf16_f32 v{T + 2}, v{S + 4 * q}, v{S + 4 * q + 1}")
        k(f"v_cvt_pk_bf16_f32 v{T + 3}, v{S + 4 * q + 2}, v{S + 4 * q + 3}")
        k(f"buffer_store_dwordx2 {vr(T + 2, 2)}, v{T0}, s[28:31], 0 offen offset:{16 * q}")
        k("s_nop 1")
    k.label("L_fin_done")
    k("s_endpgm")
    return k.text(), dict(vgpr=176, sgpr=64, accum=176)


def signal(k, ctr_dword_sgpr_or_imm, tag):
    k("s_waitcnt vmcnt(0)")
    k("s_barrier")
    k("s_cmp_lg_u32 s3, 0")
    k(f"s_cbranch_scc1 L_sig_{tag}")
    make_srd(k, 56, 8, 256)
    if isinstance(ctr_dword_sgpr_or_imm, int):
        k(f"v_mov_b32 v{T2}, {4 * ctr_dword_sgpr_or_imm}")
    else:
        k(f"s_lshl_b32 s14, {ctr_dword_sgpr_or_imm}, 2")
        k(f"v_mov_b32 v{T2}, s14")
    k(f"v_mov_b32 v{T3}, 1")
    k("s_mov_b64 exec, 1")
    k(f"buffer_atomic_add v{T3}, v{T2}, s[56:59], 0 offen sc1")
    k("s_mov_b64 exec, -1")
    k.label(f"L_sig_{tag}")


def wait_for(k, ctr_dword_sgpr_or_imm, count, tag, acquire, T2=T2, T3=T3):
    k("s_cmp_lg_u32 s3, 0")
    k(f"s_cbranch_scc1 L_wdone_{tag}")
    make_srd(k, 56, 8, 256)
    if isinstance(ctr_dword_sgpr_or_imm, int):
        k(f"v_mov_b32 v{T2}, {4 * ctr_dword_sgpr_or_imm}")
    else:
        k(f"s_lshl_b32 s14, {ctr_dword_sgpr_or_imm}, 2")
        k(f"v_mov_b32 v{T2}, s14")
    k("s_mov_b32 s49, 0x400000")
    k.label(f"L_wpoll_{tag}")
    k(f"buffer_load_dword v{T3}, v{T2}, s[56:59], 0 offen sc1")
    k("s_waitcnt vmcnt(0)")
    k(f"v_readfirstlane_b32 s14, v{T3}")
    k("s_sub_u32 s49, s49, 1")
    k("s_cmp_eq_u32 s49, 0")
    k(f"s_cbranch_scc1 L_wacq_{tag}")
    k(f"s_cmp_ge_u32 s14, {count}")
    k(f"s_cbranch_scc1 L_wacq_{tag}")
    k("s_sleep 2")
    k(f"s_branch L_wpoll_{tag}")
    k.label(f"L_wacq_{tag}")
    if acquire:
        k("buffer_inv sc1")
        k("s_waitcnt vmcnt(0)")
    k.label(f"L_wdone_{tag}")
    k("s_barrier")
    if acquire:
        pass


def gen_g2_4w(k):
    R, CH, XCH, RB, XB = G2_R, G2_CH, 16384, 128, 128
    V_WA, V_XA, V_DW, V_DX, V_TA = 12, 14, 18, 20, 24
    V_XF, V_WF, V_ACC, T = 32, 64, 128, 160
    P = 6
    k.vm_q = []
    k.lds_q = []
    k("s_load_dwordx2 s[10:11], s[0:1], 96")
    k("s_load_dwordx2 s[4:5], s[0:1], 56")
    k("s_load_dwordx2 s[6:7], s[0:1], 64")
    k("s_load_dwordx2 s[8:9], s[0:1], 88")
    ids(k, 14, 2)
    w_read_addrs(k, RB, XCH, V_WA, 2)
    k("s_lshl_b32 s14, s3, 5")
    k(f"v_add_u32 v{T0}, s14, v{V_L31}")
    k(f"v_lshlrev_b32 v{T1}, 7, v{T0}")
    k(f"v_bfe_u32 v{T2}, v{T0}, 1, 3")
    for t in range(4):
        k(f"v_add_u32 v{T3}, {2 * t}, v{V_H}")
        k(f"v_xor_b32 v{T3}, v{T3}, v{T2}")
        k(f"v_lshl_add_u32 v{V_XA + t}, v{T3}, 4, v{T1}")
    dma_src(k, XB, 4096, 4, V_DX, 'x')
    dma_src(k, RB, 1792, 2, V_DW, 'w')
    k("s_waitcnt lgkmcnt(0)")
    make_srd(k, S_X, 4, 2048 * 4096)
    make_srd(k, S_W, 10, 2048 * 1792, add_lo=WS_Z2N)
    k(f"s_lshl_b32 s{S_XOFF}, s{S_BM}, 19")
    k(f"s_lshl_b32 s{S_WOFF}, s{S_BN}, 7")
    wait_for(k, 16, 64, "g2", True)

    def dma(slot):
        for i in range(4):
            k(f"s_add_u32 m0, s{S_WV}, {slot * CH + 4096 * i}")
            k("s_nop 0")
            k(f"buffer_load_dwordx4 v{V_DX + i}, {sr(S_X, 4)}, s{S_XOFF} offen lds")
        k(f"s_add_u32 s{S_XOFF}, s{S_XOFF}, 128")
        for i in range(2):
            k(f"s_add_u32 m0, s{S_WV}, {slot * CH + XCH + 4096 * i}")
            k("s_nop 0")
            k(f"buffer_load_dwordx4 v{V_DW + i}, {sr(S_W, 4)}, s{S_WOFF} offen lds")
        k(f"s_add_u32 s{S_WOFF}, s{S_WOFF}, {64 * 1792}")

    def mf(buf, first):
        out = []
        for ks in range(4):
            for nt in range(2):
                i = ks * 2 + nt
                o = vr(V_ACC + 16 * nt, 16)
                c_ = "0" if (first and ks == 0) else o
                out.append(mfma(o, vr(V_WF + 32 * buf + 4 * i, 4), vr(V_XF + 16 * buf + 4 * ks, 4), c_))
        return out

    def step(slot, buf, prev, wait):
        k(f"s_waitcnt vmcnt({wait}) lgkmcnt(0)")
        k("s_barrier")
        base = slot * CH
        xa, wa, boff = V_XA, V_WA, base
        if base + CH > 65536:
            boff = 0
            for t in range(4):
                k(f"v_add_u32 v{V_TA + t}, {base}, v{V_XA + t}")
            for t in range(2):
                k(f"v_add_u32 v{V_TA + 4 + t}, {base}, v{V_WA + t}")
            xa, wa = V_TA, V_TA + 4
        d = []
        sl2 = (slot + R - 1) % R
        for i in range(4):
            d.append([f"s_add_u32 m0, s{S_WV}, {sl2 * CH + 4096 * i}", "s_nop 0",
                      f"buffer_load_dwordx4 v{V_DX + i}, {sr(S_X, 4)}, s{S_XOFF} offen lds"])
        d[-1].append(f"s_add_u32 s{S_XOFF}, s{S_XOFF}, 128")
        for i in range(2):
            d.append([f"s_add_u32 m0, s{S_WV}, {sl2 * CH + XCH + 4096 * i}", "s_nop 0",
                      f"buffer_load_dwordx4 v{V_DW + i}, {sr(S_W, 4)}, s{S_WOFF} offen lds"])
        d[-1].append(f"s_add_u32 s{S_WOFF}, s{S_WOFF}, {64 * 1792}")
        for ks in range(4):
            k(f"ds_read_b128 {vr(V_XF + 16 * buf + 4 * ks, 4)}, v{xa + ks} offset:{boff}")
            for nt in range(2):
                i = ks * 2 + nt
                for u in range(2):
                    off = boff + (16 * ks + 4 * u) * RB
                    k(f"ds_read_b64_tr_b16 {vr(V_WF + 32 * buf + 4 * i + 2 * u, 2)}, v{wa + nt} offset:{off}")
                if prev:
                    k(prev[i])
                if d and i >= 1:
                    for o in d.pop(0):
                        k(o)
        for g_ in d:
            for o in g_:
                k(o)

    for s_ in range(R - 1):
        dma(s_)
    W0 = (R - 2) * P
    step(0, 0, None, W0)
    step(1, 1, mf(0, True), W0)
    k(f"s_mov_b32 s{S_CNT}, 5")
    k.label("L_g2_loop")
    for j in range(6):
        c = 2 + j
        step(c % R, c & 1, mf((c - 1) & 1, False), W0)
    k(f"s_sub_u32 s{S_CNT}, s{S_CNT}, 1")
    k(f"s_cmp_lg_u32 s{S_CNT}, 0")
    k("s_cbranch_scc1 L_g2_loop")
    k("s_waitcnt lgkmcnt(0)")
    for x in mf(1, False):
        k(x)
    make_srd(k, 24, 10, 2048 * 1792, add_lo=WS_Z1A)
    make_srd(k, 28, 10, 2048 * 1792, add_lo=WS_UF)
    make_srd(k, 32, 6, 4096)
    k(f"s_lshl_b32 s14, s{S_BM}, 2")
    k("s_add_u32 s44, s14, s3")
    k("s_lshl_b32 s14, s44, 5")
    k(f"v_add_u32 v{V_ROW}, s14, v{V_L31}")
    k(f"v_lshlrev_b32 v{T1}, 1, v{V_ROW}")
    k(f"buffer_load_ushort v{T2}, v{T1}, s[32:35], 0 offen")
    k("s_mul_i32 s14, s44, 57344")
    k(f"s_lshl_b32 s15, s{S_BN}, 12")
    k("s_add_u32 s14, s14, s15")
    k(f"v_lshlrev_b32 v{T0}, 3, v1")
    Z = V_WF
    for nt in range(2):
        for q in range(4):
            k(f"buffer_load_dwordx2 {vr(Z + 2 * (4 * nt + q), 2)}, v{T0}, s[24:27], s14 offen offset:{2048 * nt + 512 * q}")
    k("s_waitcnt vmcnt(0)")
    k(f"v_lshlrev_b32 v{T2}, 16, v{T2}")
    for nt in range(2):
        PK = V_XF + 8 * nt
        for q in range(4):
            r0 = V_ACC + 16 * nt + 4 * q
            z = Z + 2 * (4 * nt + q)
            for j in range(4):
                round_bf16(k, r0 + j, r0 + j)
                k(f"v_add_f32 v{r0 + j}, v{r0 + j}, v{T2}")
                round_bf16(k, r0 + j, r0 + j)
                if j & 1:
                    k(f"v_and_b32 v{T}, 0xffff0000, v{z + (j >> 1)}")
                else:
                    k(f"v_lshlrev_b32 v{T}, 16, v{z + (j >> 1)}")
                k(f"v_mul_f32 v{r0 + j}, v{r0 + j}, v{T}")
            k(f"v_cvt_pk_bf16_f32 v{PK + 2 * q}, v{r0}, v{r0 + 1}")
            k(f"v_cvt_pk_bf16_f32 v{PK + 2 * q + 1}, v{r0 + 2}, v{r0 + 3}")
        k("s_nop 1")
        for a, b in ((0, 2), (1, 3), (4, 6), (5, 7)):
            k(f"v_permlane32_swap_b32 v{PK + a}, v{PK + b}")
        k("s_nop 1")
        k(f"buffer_store_dwordx4 {vr(PK, 4)}, v{V_L16}, s[28:31], s14 offen offset:{2048 * nt}")
        k(f"buffer_store_dwordx4 {vr(PK + 4, 4)}, v{V_L16}, s[28:31], s14 offen offset:{2048 * nt + 1024}")
    k("s_endpgm")


def gen_g1b(k):
    k.vm_q = []
    k.lds_q = []
    V_WA, V_WA2, V_DW = 12, 16, 20
    V_XF, V_ACC, T, PKR = 32, 144, 208, 216
    RB, CH = 256, 16384
    k("s_load_dwordx2 s[10:11], s[0:1], 96")
    k("s_load_dwordx2 s[6:7], s[0:1], 48")
    ids(k, 14, 2)
    w_read_addrs(k, RB, 0, V_WA, 4)
    for d in range(4):
        k(f"v_add_u32 v{V_WA2 + d}, 0x10000, v{V_WA + d}")
    dma_src(k, RB, 3584, 4, V_DW, 'w')
    k("s_waitcnt lgkmcnt(0)")
    make_srd(k, S_X, 10, 2048 * 896, add_lo=WS_XNF)
    make_srd(k, S_W, 6, 448 * 3584)
    k(f"s_lshl_b32 s{S_WOFF}, s{S_BN}, 8")
    k(f"s_lshl_b32 s14, s{S_BM}, 2")
    k("s_add_u32 s44, s14, s3")
    k("s_mul_i32 s15, s44, 28672")
    for c in range(7):
        for i in range(4):
            k(f"s_add_u32 m0, s{S_WV}, {c * CH + 4096 * i}")
            k("s_nop 0")
            k.vm(f"buffer_load_dwordx4 v{V_DW + i}, {sr(S_W, 4)}, s{S_WOFF} offen lds", ("w", c))
        k(f"s_add_u32 s{S_WOFF}, s{S_WOFF}, {64 * 3584}")
        for t in range(4 * c, 4 * c + 4):
            k.vm(f"buffer_load_dwordx4 {vr(V_XF + 4 * t, 4)}, v{V_L16}, {sr(S_X, 4)}, s15 offen offset:{1024 * (t & 3)}", ("x", c))
        k("s_add_u32 s15, s15, 4096")
    make_srd(k, 24, 10, 2048 * 1792, add_lo=WS_Z1A)
    make_srd(k, 28, 10, 2048 * 1792, add_lo=WS_Z2)
    k("s_mul_i32 s45, s44, 57344")
    k(f"s_lshl_b32 s15, s{S_BN}, 13")
    k("s_add_u32 s45, s45, s15")
    k(f"v_lshlrev_b32 v24, 3, v1")
    k(f"s_sub_u32 s15, s{S_BN}, 7")
    k("s_lshl_b32 s15, s15, 8")
    k("s_lshl_b32 s14, s44, 5")
    k(f"v_add_u32 v{V_ROW}, s14, v{V_L31}")
    k(f"v_mul_u32_u24 v25, 1792, v{V_ROW}")
    k(f"v_add_u32 v25, s15, v25")
    k(f"v_lshl_add_u32 v25, v{V_H}, 4, v25")

    def reads(c, nt, buf):
        out = []
        for ks in range(4):
            for u in range(2):
                off = c * CH + (16 * ks + 4 * u) * RB
                wa = V_WA
                if off >= 65536:
                    off -= 65536
                    wa = V_WA2
                out.append(f"ds_read_b64_tr_b16 {ar(16 * buf + 4 * ks + 2 * u, 2)}, v{wa + nt} offset:{off}")
        return out

    def mfs(c, nt, buf):
        o = vr(V_ACC + 16 * nt, 16)
        return [mfma(o, ar(16 * buf + 4 * ks, 4), vr(V_XF + 4 * (4 * c + ks), 4), "0" if (c == 0 and ks == 0) else o)
                for ks in range(4)]

    class Rec:
        def __init__(self):
            self.l = []

        def __call__(self, s_):
            self.l.append(s_)

    def epi_ops(nt, z2):
        r_ = Rec()
        A = V_ACC + 16 * nt
        for r in range(0, 16, 2):
            round_bf16(r_, A + r, A + r)
            round_bf16(r_, A + r + 1, A + r + 1)
            gelu2_ops(r_, A + r, A + r + 1, T)
        P = PKR + 8 * (nt & 1)
        if not z2:
            for q in range(4):
                r_(f"v_cvt_pk_bf16_f32 v{P + 2 * q}, v{A + 4 * q}, v{A + 4 * q + 1}")
                r_(f"v_cvt_pk_bf16_f32 v{P + 2 * q + 1}, v{A + 4 * q + 2}, v{A + 4 * q + 3}")
                r_(f"buffer_store_dwordx2 {vr(P + 2 * q, 2)}, v24, s[24:27], s45 offen offset:{512 * q}")
            r_("s_add_u32 s45, s45, 2048")
        else:
            for i in range(8):
                r_(f"v_cvt_pk_bf16_f32 v{P + i}, v{A + 2 * i}, v{A + 2 * i + 1}")
            r_("s_nop 1")
            for a_, b_ in ((0, 2), (1, 3), (4, 6), (5, 7)):
                r_(f"v_permlane32_swap_b32 v{P + a_}, v{P + b_}")
            r_("s_nop 1")
            r_(f"buffer_store_dwordx4 {vr(P, 4)}, v25, s[28:31], 0 offen offset:{64 * nt}")
            r_(f"buffer_store_dwordx4 {vr(P + 4, 4)}, v25, s[28:31], 0 offen offset:{64 * nt + 32}")
        return r_.l

    step = 0
    for c in range(7):
        k.vm_wait([("w", c), ("x", c)])
        k("s_waitcnt lgkmcnt(0)")
        k("s_barrier")
        rd = reads(c, 0, step & 1)
        mf = mfs(c - 1, 0, (step - 1) & 1) if c else []
        for i in range(4):
            k(rd[2 * i])
            k(rd[2 * i + 1])
            if mf:
                k(mf[i])
        step += 1
    k(f"s_cmp_ge_u32 s{S_BN}, 7")
    k("s_cbranch_scc1 L_g1b_z2")
    for z2 in (False, True):
        if z2:
            k.label("L_g1b_z2")
        st = step
        prev = (6, 0)
        for nt in range(1, 4):
            ep = epi_ops(nt - 1, z2)
            per = (len(ep) + 23) // 24
            n = 0
            for c in range(7):
                k("s_waitcnt lgkmcnt(0)")
                rd = reads(c, nt, st & 1)
                mf = mfs(prev[0], prev[1], (st - 1) & 1)
                for i in range(4):
                    k(rd[2 * i])
                    k(rd[2 * i + 1])
                    k(mf[i])
                    n += 1
                    if n > 8 or (n > 4 and False):
                        for o in ep[:per + 2]:
                            k(o)
                        ep = ep[per + 2:]
                prev = (c, nt)
                st += 1
            for o in ep:
                k(o)
        k("s_waitcnt lgkmcnt(0)")
        for x in mfs(6, 3, (st - 1) & 1):
            k(x)
        k("s_nop 15")
        k("s_nop 3")
        for o in epi_ops(3, z2):
            k(o)
        k("s_endpgm")


def gen_ln2_branch(k):
    k("s_load_dwordx2 s[10:11], s[0:1], 96")
    k("s_load_dwordx2 s[8:9], s[0:1], 88")
    k("v_and_b32 v1, 63, v0")
    k(f"v_lshrrev_b32 v{T0}, 6, v0")
    k("s_nop 0")
    k(f"v_readfirstlane_b32 s3, v{T0}")
    k("s_nop 3")
    k("s_lshr_b32 s38, s2, 1")
    k("s_waitcnt lgkmcnt(0)")
    wait_for(k, "s38", 14, "ln2", False)
    make_srd(k, 20, 10, 2048 * 1792, add_lo=WS_Z2)
    make_srd(k, 24, 10, 2048 * 1792, add_lo=WS_Z2N)
    k("s_lshl_b32 s14, s2, 6")
    k("s_lshl_b32 s15, s3, 4")
    k("s_add_u32 s14, s14, s15")
    k("s_mul_i32 s14, s14, 1792")
    k("v_lshlrev_b32 v3, 4, v1")
    k("v_cmp_gt_u32 vcc, 56, v1")
    k("v_mov_b32 v4, 0x7ffffff0")
    k("s_nop 1")
    k("v_cndmask_b32 v3, v4, v3, vcc")
    D = 128
    U = 32
    M, Q, W1, W2, W3 = 12, 16, 20, 24, 28
    k("s_mov_b32 s15, s14")
    for r in range(16):
        k(f"buffer_load_dwordx4 {vr(D + 8 * r, 4)}, v3, s[20:23], s15 offen sc1")
        k(f"buffer_load_dwordx4 {vr(D + 8 * r + 4, 4)}, v3, s[20:23], s15 offen offset:896 sc1")
        k("s_add_u32 s15, s15, 1792")

    def allreduce4(V):
        for m in (1, 2, 4, 8, 16):
            for j in range(4):
                k(f"ds_swizzle_b32 v{W1 + j}, v{V + j} offset:{(m << 10) | 0x1F}")
            k("s_waitcnt lgkmcnt(0)")
            for j in range(4):
                k(f"v_add_f32 v{V + j}, v{V + j}, v{W1 + j}")
        for j in range(4):
            k(f"v_mov_b32 v{W1 + j}, v{V + j}")
        k("s_nop 1")
        for j in range(4):
            k(f"v_permlane32_swap_b32 v{W1 + j}, v{V + j}")
        k("s_nop 1")
        for j in range(4):
            k(f"v_add_f32 v{V + j}, v{V + j}, v{W1 + j}")

    for g in range(4):
        k(f"s_waitcnt vmcnt({24 - 8 * g})")
        for j in range(4):
            X = D + 8 * (4 * g + j)
            for i in range(8):
                k(f"v_lshlrev_b32 v{U + 16 * j + 2 * i}, 16, v{X + i}")
                k(f"v_and_b32 v{U + 16 * j + 2 * i + 1}, 0xffff0000, v{X + i}")
        for j in range(4):
            k(f"v_add_f32 v{M + j}, v{U + 16 * j}, v{U + 16 * j + 1}")
        for i in range(2, 16):
            for j in range(4):
                k(f"v_add_f32 v{M + j}, v{M + j}, v{U + 16 * j + i}")
        allreduce4(M)
        for j in range(4):
            k(f"v_mul_f32 v{M + j}, 0x3a924925, v{M + j}")
            k(f"v_mov_b32 v{Q + j}, 0")
        for i in range(16):
            for j in range(4):
                k(f"v_sub_f32 v{W2 + j}, v{U + 16 * j + i}, v{M + j}")
            for j in range(4):
                k(f"v_fmac_f32 v{Q + j}, v{W2 + j}, v{W2 + j}")
        for j in range(4):
            k(f"v_cndmask_b32 v{Q + j}, 0, v{Q + j}, vcc")
        allreduce4(Q)
        for j in range(4):
            k(f"v_mul_f32 v{Q + j}, 0x3a924925, v{Q + j}")
            round_bf16(k, M + j, M + j)
            round_bf16(k, Q + j, Q + j)
            k(f"v_add_f32 v{Q + j}, 0x3727c5ac, v{Q + j}")
            round_bf16(k, Q + j, Q + j)
        for j in range(4):
            k(f"v_sqrt_f32 v{Q + j}, v{Q + j}")
        for j in range(4):
            round_bf16(k, Q + j, Q + j)
        for j in range(4):
            k(f"v_rcp_f32 v{Q + j}, v{Q + j}")
        for i in range(8):
            for j in range(4):
                k(f"v_sub_f32 v{W1 + j}, v{U + 16 * j + 2 * i}, v{M + j}")
                k(f"v_sub_f32 v{W2 + j}, v{U + 16 * j + 2 * i + 1}, v{M + j}")
            for j in range(4):
                k(f"v_cvt_pk_bf16_f32 v{W3 + j}, v{W1 + j}, v{W2 + j}")
            for j in range(4):
                k(f"v_lshlrev_b32 v{W1 + j}, 16, v{W3 + j}")
                k(f"v_and_b32 v{W2 + j}, 0xffff0000, v{W3 + j}")
            for j in range(4):
                k(f"v_mul_f32 v{W1 + j}, v{W1 + j}, v{Q + j}")
                k(f"v_mul_f32 v{W2 + j}, v{W2 + j}, v{Q + j}")
            for j in range(4):
                k(f"v_cvt_pk_bf16_f32 v{D + 8 * (4 * g + j) + i}, v{W1 + j}, v{W2 + j}")
    for r in range(16):
        k(f"buffer_store_dwordx4 {vr(D + 8 * r, 4)}, v3, s[24:27], s14 offen")
        k(f"buffer_store_dwordx4 {vr(D + 8 * r + 4, 4)}, v3, s[24:27], s14 offen offset:896")
        k("s_add_u32 s14, s14, 1792")
    k("s_endpgm")


def gen_ln_branch(k):
    k("s_load_dwordx2 s[10:11], s[0:1], 96")
    k("s_load_dwordx2 s[8:9], s[0:1], 88")
    k("s_load_dwordx2 s[4:5], s[0:1], 0")
    k("s_load_dwordx2 s[28:29], s[0:1], 24")
    k("s_load_dwordx2 s[32:33], s[0:1], 48")
    k("v_and_b32 v1, 63, v0")
    k(f"v_lshrrev_b32 v{T0}, 6, v0")
    k("s_nop 0")
    k(f"v_readfirstlane_b32 s3, v{T0}")
    k("s_nop 3")
    k("s_lshr_b32 s38, s2, 2")
    k("s_add_u32 s38, s38, 32")
    k("s_waitcnt lgkmcnt(0)")
    make_srd(k, 20, 4, 2048 * 896)
    make_srd(k, 24, 10, 2048 * 896, add_lo=WS_XNF)
    k("s_lshl_b32 s14, s2, 5")
    k("s_lshl_b32 s15, s3, 3")
    k("s_add_u32 s14, s14, s15")
    k("s_mul_i32 s15, s14, 896")
    k("v_lshlrev_b32 v3, 4, v1")
    k("v_cmp_gt_u32 vcc, 56, v1")
    k("v_mov_b32 v4, 0x7ffffff0")
    k("s_nop 1")
    k("v_cndmask_b32 v3, v4, v3, vcc")
    D = 128
    U = 32
    M, Q, W1, W2, W3 = 12, 16, 20, 24, 28
    for r in range(8):
        k(f"buffer_load_dwordx4 {vr(D + 4 * r, 4)}, v3, s[20:23], s15 offen")
        k("s_add_u32 s15, s15, 896")
    k("s_lshl_b32 s15, s2, 2")
    k("s_add_u32 s15, s15, s3")
    k("s_mov_b32 s30, %d" % (448 * 8192))
    k("s_mov_b32 s31, 0x00020000")
    k("s_mov_b32 s34, %d" % (448 * 3584))
    k("s_mov_b32 s35, 0x00020000")
    k("v_lshlrev_b32 v5, 7, v1")
    k("s_mul_i32 s39, s15, %d" % (112 * 128))
    k("buffer_load_dword v6, v5, s[28:31], s39 offen")
    k("s_add_u32 s39, s39, 8192")
    k("v_cmp_gt_u32 s[40:41], 48, v1")
    k("v_mov_b32 v7, 0x7fffff00")
    k("s_nop 1")
    k("v_cndmask_b32 v8, v7, v5, s[40:41]")
    k("buffer_load_dword v6, v8, s[28:31], s39 offen")
    k("v_cmp_gt_u32 s[40:41], 49, v1")
    k("s_mul_i32 s39, s15, %d" % (49 * 128))
    k("s_nop 1")
    k("v_cndmask_b32 v8, v7, v5, s[40:41]")
    k("buffer_load_dword v6, v8, s[32:35], s39 offen")
    k("v_lshrrev_b32 v9, 1, v1")
    k("v_lshlrev_b32 v9, 10, v9")
    k("v_and_b32 v10, 1, v1")
    k("v_lshl_add_u32 v9, v10, 9, v9")
    k("v_cndmask_b32 v9, v4, v9, vcc")
    k("s_mul_i32 s14, s2, 28672")
    k("s_lshl_b32 s15, s3, 7")
    k("s_add_u32 s14, s14, s15")

    def allreduce4(V):
        for m in (1, 2, 4, 8, 16):
            for j in range(4):
                k(f"ds_swizzle_b32 v{W1 + j}, v{V + j} offset:{(m << 10) | 0x1F}")
            k("s_waitcnt lgkmcnt(0)")
            for j in range(4):
                k(f"v_add_f32 v{V + j}, v{V + j}, v{W1 + j}")
        for j in range(4):
            k(f"v_mov_b32 v{W1 + j}, v{V + j}")
        k("s_nop 1")
        for j in range(4):
            k(f"v_permlane32_swap_b32 v{W1 + j}, v{V + j}")
        k("s_nop 1")
        for j in range(4):
            k(f"v_add_f32 v{V + j}, v{V + j}, v{W1 + j}")

    for g in range(2):
        k(f"s_waitcnt vmcnt({7 - 4 * g})")
        for j in range(4):
            X = D + 4 * (4 * g + j)
            for i in range(4):
                k(f"v_lshlrev_b32 v{U + 8 * j + 2 * i}, 16, v{X + i}")
                k(f"v_and_b32 v{U + 8 * j + 2 * i + 1}, 0xffff0000, v{X + i}")
        for j in range(4):
            k(f"v_add_f32 v{M + j}, v{U + 8 * j}, v{U + 8 * j + 1}")
        for i in range(2, 8):
            for j in range(4):
                k(f"v_add_f32 v{M + j}, v{M + j}, v{U + 8 * j + i}")
        allreduce4(M)
        for j in range(4):
            k(f"v_mul_f32 v{M + j}, 0x3b124925, v{M + j}")
            k(f"v_mov_b32 v{Q + j}, 0")
        for i in range(8):
            for j in range(4):
                k(f"v_sub_f32 v{W2 + j}, v{U + 8 * j + i}, v{M + j}")
            for j in range(4):
                k(f"v_fmac_f32 v{Q + j}, v{W2 + j}, v{W2 + j}")
        for j in range(4):
            k(f"v_cndmask_b32 v{Q + j}, 0, v{Q + j}, vcc")
        allreduce4(Q)
        for j in range(4):
            k(f"v_mul_f32 v{Q + j}, 0x3b124925, v{Q + j}")
            round_bf16(k, M + j, M + j)
            round_bf16(k, Q + j, Q + j)
            k(f"v_add_f32 v{Q + j}, 0x3727c5ac, v{Q + j}")
            round_bf16(k, Q + j, Q + j)
        for j in range(4):
            k(f"v_sqrt_f32 v{Q + j}, v{Q + j}")
        for j in range(4):
            round_bf16(k, Q + j, Q + j)
        for j in range(4):
            k(f"v_rcp_f32 v{Q + j}, v{Q + j}")
        for i in range(4):
            for j in range(4):
                k(f"v_sub_f32 v{W1 + j}, v{U + 8 * j + 2 * i}, v{M + j}")
                k(f"v_sub_f32 v{W2 + j}, v{U + 8 * j + 2 * i + 1}, v{M + j}")
            for j in range(4):
                k(f"v_cvt_pk_bf16_f32 v{W3 + j}, v{W1 + j}, v{W2 + j}")
            for j in range(4):
                k(f"v_lshlrev_b32 v{W1 + j}, 16, v{W3 + j}")
                k(f"v_and_b32 v{W2 + j}, 0xffff0000, v{W3 + j}")
            for j in range(4):
                k(f"v_mul_f32 v{W1 + j}, v{W1 + j}, v{Q + j}")
                k(f"v_mul_f32 v{W2 + j}, v{W2 + j}, v{Q + j}")
            for j in range(4):
                k(f"v_cvt_pk_bf16_f32 v{D + 4 * (4 * g + j) + i}, v{W1 + j}, v{W2 + j}")
        for j in range(4):
            r = 4 * g + j
            k(f"buffer_store_dwordx4 {vr(D + 4 * r, 4)}, v9, s[24:27], s14 offen offset:{16 * r} sc1")
    signal(k, "s38", "ln")
    k("s_endpgm")
```

```python
from asmlib import *
from layout import *


def wave_allreduce_add(k, v, t):
    import os
    if 'nodpp' not in os.environ.get('ABL', ''):
        for sh in (1, 2, 4, 8):
            k("s_nop 1")
            k(f"v_add_f32_dpp v{v}, v{v}, v{v} row_shr:{sh} row_mask:0xf bank_mask:0xf bound_ctrl:0")
        k("s_nop 1")
        k(f"v_add_f32_dpp v{v}, v{v}, v{v} row_bcast:15 row_mask:0xa bank_mask:0xf")
        k("s_nop 1")
        k(f"v_add_f32_dpp v{v}, v{v}, v{v} row_bcast:31 row_mask:0xc bank_mask:0xf")
        k("s_nop 1")
        k(f"v_readlane_b32 s26, v{v}, 63")
        k("s_nop 1")
        k(f"v_mov_b32 v{v}, s26")
        return
    for m in (1, 2, 4, 8, 16):
        k(f"ds_swizzle_b32 v{t}, v{v} offset:{(m << 10) | 0x1F}")
        k("s_waitcnt lgkmcnt(0)")
        k(f"v_add_f32 v{v}, v{v}, v{t}")
    k(f"v_mov_b32 v{t}, v{v}")
    k("s_nop 1")
    k(f"v_permlane32_swap_b32 v{t}, v{v}")
    k("s_nop 1")
    k(f"v_add_f32 v{v}, v{v}, v{t}")


def round_bf16(k, dst, src):
    k(f"v_cvt_pk_bf16_f32 v{dst}, v{src}, v{src}")
    k(f"v_and_b32 v{dst}, 0xffff0000, v{dst}")


def gen_ln():
    k = Kern("ln")
    k("s_cmp_ge_u32 s2, 512")
    k("s_cbranch_scc1 L_ln_done")
    k("s_load_dwordx2 s[4:5], s[0:1], 0")
    k("s_load_dwordx2 s[6:7], s[0:1], 96")
    k("v_lshrrev_b32 v1, 6, v0")
    k("v_and_b32 v2, 63, v0")
    k("s_lshl_b32 s3, s2, 2")
    k("v_add_u32 v1, s3, v1")
    k("v_mul_u32_u24 v3, 896, v1")
    k("v_lshl_add_u32 v3, v2, 4, v3")
    k("v_cmp_gt_u32 vcc, 56, v2")
    k("v_mov_b32 v4, 0x7ffffff0")
    k("s_nop 1")
    k("v_cndmask_b32 v3, v4, v3, vcc")
    k("s_waitcnt lgkmcnt(0)")
    make_srd(k, 8, 4, 2048 * 896)
    make_srd(k, 12, 6, 2048 * 896, add_lo=WS_XNF)
    k("buffer_load_dwordx4 v[8:11], v3, s[8:11], 0 offen")
    import os
    if 'nolnpf' not in os.environ.get('ABL', ''):
        k("s_load_dwordx2 s[16:17], s[0:1], 24")
        k("s_load_dwordx2 s[18:19], s[0:1], 48")
        k("v_mov_b32 v31, 0x7fffff00")
        k("s_waitcnt lgkmcnt(0)")
        for ptr, nbytes, per in ((16, 448 * 8192, 14), (18, 448 * 3584, 7)):
            make_srd(k, 20, ptr, nbytes)
            k(f"v_mul_u32_u24 v30, {per}, v1")
            k("v_add_u32 v30, v30, v2")
            k("v_lshlrev_b32 v30, 7, v30")
            k(f"v_cmp_gt_u32 s[24:25], {per}, v2")
            k("s_nop 1")
            k("v_cndmask_b32 v30, v31, v30, s[24:25]")
            k("buffer_load_dword v27, v30, s[20:23], 0 offen")
        if 'kv0' in os.environ.get('ABL', ''):
            k("s_load_dwordx2 s[16:17], s[0:1], 8")
            k("s_load_dwordx2 s[18:19], s[0:1], 16")
            k("v_lshrrev_b32 v29, 7, v1")
            k("v_and_b32 v30, 127, v1")
            k("v_mul_u32_u24 v30, 3, v30")
            k("v_add_u32 v30, v30, v2")
            k("v_lshlrev_b32 v30, 7, v30")
            k("v_lshl_add_u32 v30, v29, 20, v30")
            k("v_cmp_gt_u32 s[24:25], 3, v2")
            k("s_nop 1")
            k("v_cndmask_b32 v30, v31, v30, s[24:25]")
            k("s_waitcnt lgkmcnt(0)")
            for ptr in (16, 18):
                make_srd(k, 20, ptr, 16 << 20)
                k("buffer_load_dword v27, v30, s[20:23], 0 offen")
    k("v_lshrrev_b32 v28, 5, v1")
    k("v_mul_u32_u24 v28, 28672, v28")
    k("v_lshrrev_b32 v29, 1, v2")
    k("v_lshl_add_u32 v28, v29, 10, v28")
    k("v_and_b32 v29, 1, v2")
    k("v_lshl_add_u32 v28, v29, 9, v28")
    k("v_and_b32 v29, 31, v1")
    k("v_lshl_add_u32 v28, v29, 4, v28")
    k("v_cndmask_b32 v28, v4, v28, vcc")
    k("s_waitcnt vmcnt(0)" if 'nolnpf' in os.environ.get('ABL', '') else "s_waitcnt vmcnt(2)")
    for i in range(4):
        k(f"v_lshlrev_b32 v{16 + 2 * i}, 16, v{8 + i}")
        k(f"v_and_b32 v{17 + 2 * i}, 0xffff0000, v{8 + i}")
    k("v_add_f32 v5, v16, v17")
    for i in range(2, 8):
        k(f"v_add_f32 v5, v5, v{16 + i}")
    wave_allreduce_add(k, 5, 6)
    k("v_mul_f32 v5, 0x3b124925, v5")
    k("v_mov_b32 v7, 0")
    for i in range(8):
        k(f"v_sub_f32 v24, v{16 + i}, v5")
        k("v_fmac_f32 v7, v24, v24")
    k("v_cndmask_b32 v7, 0, v7, vcc")
    wave_allreduce_add(k, 7, 6)
    k("v_mul_f32 v7, 0x3b124925, v7")
    round_bf16(k, 5, 5)
    round_bf16(k, 7, 7)
    k("v_add_f32 v7, 0x3727c5ac, v7")
    round_bf16(k, 7, 7)
    k("v_sqrt_f32 v7, v7")
    k("s_nop 0")
    round_bf16(k, 7, 7)
    k("v_rcp_f32 v7, v7")
    k("s_nop 0")
    for i in range(4):
        k(f"v_sub_f32 v24, v{16 + 2 * i}, v5")
        k(f"v_sub_f32 v25, v{17 + 2 * i}, v5")
        k("v_cvt_pk_bf16_f32 v26, v24, v25")
        k("v_lshlrev_b32 v24, 16, v26")
        k("v_and_b32 v25, 0xffff0000, v26")
        k("v_mul_f32 v24, v24, v7")
        k("v_mul_f32 v25, v25, v7")
        k(f"v_cvt_pk_bf16_f32 v{8 + i}, v24, v25")
    k("buffer_store_dwordx4 v[8:11], v28, s[12:15], 0 offen")
    if 'codepf' in os.environ.get('ABL', ''):
        k("s_getpc_b64 s[28:29]")
        k.label("L_ln_pc")
        k("v_lshlrev_b32 v26, 13, v1")
        k("v_lshl_add_u32 v26, v2, 7, v26")
        k("v_mov_b32 v25, L_text_end-L_ln_pc")
        k("v_cmp_lt_u32 s[24:25], v26, v25")
        k("s_and_saveexec_b64 s[30:31], s[24:25]")
        k("s_cbranch_execz L_ln_nocode")
        k("global_load_dword v27, v26, s[28:29]")
        k.label("L_ln_nocode")
        k("s_mov_b64 exec, s[30:31]")
    k.label("L_ln_done")
    k("s_endpgm")
    return k.text(), dict(vgpr=32, sgpr=32, accum=32)


def gen_ln2():
    k = Kern("ln2")
    k("s_cmp_ge_u32 s2, 512")
    k("s_cbranch_scc1 L_ln2_done")
    k("s_load_dwordx2 s[6:7], s[0:1], 96")
    k("v_lshrrev_b32 v1, 6, v0")
    k("v_and_b32 v2, 63, v0")
    k("s_lshl_b32 s3, s2, 2")
    k("v_add_u32 v1, s3, v1")
    k("v_mul_u32_u24 v3, 1792, v1")
    k("v_lshl_add_u32 v3, v2, 4, v3")
    k("v_cmp_gt_u32 vcc, 56, v2")
    k("v_mov_b32 v4, 0x7ffffff0")
    k("s_nop 1")
    k("v_cndmask_b32 v3, v4, v3, vcc")
    k("s_waitcnt lgkmcnt(0)")
    make_srd(k, 12, 6, 2048 * 1792, add_lo=WS_Z2)
    k("buffer_load_dwordx4 v[8:11], v3, s[12:15], 0 offen")
    k("buffer_load_dwordx4 v[12:15], v3, s[12:15], 0 offen offset:896")
    k("s_waitcnt vmcnt(0)")
    for i in range(8):
        k(f"v_lshlrev_b32 v{16 + 2 * i}, 16, v{8 + i}")
        k(f"v_and_b32 v{17 + 2 * i}, 0xffff0000, v{8 + i}")
    k("v_add_f32 v5, v16, v17")
    for i in range(2, 16):
        k(f"v_add_f32 v5, v5, v{16 + i}")
    wave_allreduce_add(k, 5, 6)
    k("v_mul_f32 v5, 0x3a924925, v5")
    k("v_mov_b32 v7, 0")
    for i in range(16):
        k(f"v_sub_f32 v34, v{16 + i}, v5")
        k("v_fmac_f32 v7, v34, v34")
    k("v_cndmask_b32 v7, 0, v7, vcc")
    wave_allreduce_add(k, 7, 6)
    k("v_mul_f32 v7, 0x3a924925, v7")
    round_bf16(k, 5, 5)
    round_bf16(k, 7, 7)
    k("v_add_f32 v7, 0x3727c5ac, v7")
    round_bf16(k, 7, 7)
    k("v_sqrt_f32 v7, v7")
    k("s_nop 0")
    round_bf16(k, 7, 7)
    k("v_rcp_f32 v7, v7")
    k("s_nop 0")
    for i in range(8):
        k(f"v_sub_f32 v34, v{16 + 2 * i}, v5")
        k(f"v_sub_f32 v35, v{17 + 2 * i}, v5")
        k("v_cvt_pk_bf16_f32 v36, v34, v35")
        k("v_lshlrev_b32 v34, 16, v36")
        k("v_and_b32 v35, 0xffff0000, v36")
        k("v_mul_f32 v34, v34, v7")
        k("v_mul_f32 v35, v35, v7")
        k(f"v_cvt_pk_bf16_f32 v{8 + i}, v34, v35")
    k("buffer_store_dwordx4 v[8:11], v3, s[12:15], 0 offen")
    k("buffer_store_dwordx4 v[12:15], v3, s[12:15], 0 offen offset:896")
    k.label("L_ln2_done")
    k("s_endpgm")
    return k.text(), dict(vgpr=40, sgpr=32, accum=40)


def ln_finish(k, s1, s2, inv_n):
    k(f"v_mul_f32 v{s1}, {inv_n}, v{s1}")
    k(f"v_mul_f32 v{s2}, {inv_n}, v{s2}")
    k(f"v_fma_f32 v{s2}, -v{s1}, v{s1}, v{s2}")
    k(f"v_max_f32 v{s2}, 0, v{s2}")
    round_bf16(k, s1, s1)
    round_bf16(k, s2, s2)
    k(f"v_add_f32 v{s2}, 0x3727c5ac, v{s2}")
    round_bf16(k, s2, s2)
    k(f"v_sqrt_f32 v{s2}, v{s2}")
    k("s_nop 0")
    round_bf16(k, s2, s2)
    k(f"v_rcp_f32 v{s2}, v{s2}")
    k("s_nop 0")


def half_add(k, v, t):
    k(f"v_mov_b32 v{t}, v{v}")
    k("s_nop 1")
    k(f"v_permlane32_swap_b32 v{t}, v{v}")
    k("s_nop 1")
    k(f"v_add_f32 v{v}, v{v}, v{t}")


def reg_ln_stats(k, XF, T, NM, RS):
    A1, A2, U = T, T + 4, T + 8
    for i in range(8):
        k(f"v_mov_b32 v{T + i}, 0")
    for t in range(28):
        k.vm_wait([("x", t)])
        for i in range(4):
            r = XF + 4 * t + i
            u = U + 2 * (i & 1)
            a1, a2 = A1 + 2 * (i & 1), A2 + 2 * (i & 1)
            k(f"v_lshlrev_b32 v{u}, 16, v{r}")
            k(f"v_and_b32 v{u + 1}, 0xffff0000, v{r}")
            k(f"v_pk_add_f32 {vr(a1, 2)}, {vr(a1, 2)}, {vr(u, 2)}")
            k(f"v_pk_fma_f32 {vr(a2, 2)}, {vr(u, 2)}, {vr(u, 2)}, {vr(a2, 2)}")
    for A in (A1, A2):
        k(f"v_add_f32 v{A}, v{A}, v{A + 1}")
        k(f"v_add_f32 v{A + 2}, v{A + 2}, v{A + 3}")
        k(f"v_add_f32 v{A}, v{A}, v{A + 2}")
        half_add(k, A, U)
    ln_finish(k, A1, A2, "0x3b124925")
    k(f"v_sub_f32 v{NM}, 0, v{A1}")
    k(f"v_mov_b32 v{RS}, v{A2}")


def reg_ln_norm_ops(regs, T, NM, RS):
    ops = []
    for i, r in enumerate(regs):
        t = T + 4 * (i & 1)
        ops += [f"v_lshlrev_b32 v{t}, 16, v{r}", f"v_and_b32 v{t + 1}, 0xffff0000, v{r}",
                f"v_pk_add_f32 {vr(t, 2)}, {vr(t, 2)}, {vr(NM, 2)} op_sel_hi:[1,0]",
                f"v_cvt_pk_bf16_f32 v{t + 2}, v{t}, v{t + 1}",
                f"v_lshlrev_b32 v{t}, 16, v{t + 2}", f"v_and_b32 v{t + 1}, 0xffff0000, v{t + 2}",
                f"v_pk_mul_f32 {vr(t, 2)}, {vr(t, 2)}, {vr(RS, 2)} op_sel_hi:[1,0]",
                f"v_cvt_pk_bf16_f32 v{r}, v{t}, v{t + 1}"]
    return ops
```
